```python
import torch

def _softmax(x, axis=-1):
    return torch.softmax(x, dim=axis)
def _gelu(x):
    return torch.nn.functional.gelu(x, approximate="tanh")
def _silu(x):
    return torch.nn.functional.silu(x)
def _sigmoid(x):
    return torch.sigmoid(x)
def _layernorm(x, axis=-1, eps=1e-5):
    m = x.mean(dim=axis, keepdim=True)
    v = x.var(dim=axis, keepdim=True, unbiased=False)
    return (x - m) / torch.sqrt(v + eps)
def _scatter_add(tgt, idx, src, axis=0):
    return tgt.clone().index_add_(axis, idx, src)
def _segment_sum(src, seg, n):
    out = torch.zeros((n,) + src.shape[1:], dtype=src.dtype)
    return out.index_add_(0, seg, src)
def _pad(x, pw):
    flat = tuple(v for pair in reversed(pw) for v in pair)
    return torch.nn.functional.pad(x, flat)

kernel_name = 'sequential_preLN__sliding_block_cached__dense_activation_gelu__decode'

def setup_inputs():

    _w = (lambda a: (lambda t: t.to(torch.bfloat16) if t.is_floating_point() else t)(torch.as_tensor(a)))
    def _A_setup():
        B, Sq, D = 8, 1, 512
        Hq, Hkv, Sk, Dh = 32, 32, 4096, 128
        assert Hq % Hkv == 0, (Hq, Hkv)
        return {
            "x": _w((lambda *s: torch.randn(*s, dtype=torch.bfloat16) * 0.05)(B, Sq, D)),
            "k_cache": _w((lambda *s: torch.randn(*s, dtype=torch.bfloat16) * 1.6)(B, Hkv, Sk, Dh)),
            "v_cache": _w((lambda *s: torch.randn(*s, dtype=torch.bfloat16) * 0.4)(B, Hkv, Sk, Dh)),
            "wq": _w((lambda *s: torch.randn(*s, dtype=torch.bfloat16) * 1.6)(D, Hq * Dh) * (D ** -0.5)),
            "wo": _w((lambda *s: torch.randn(*s, dtype=torch.bfloat16) * 0.4)(Hq * Dh, D) * ((Hq * Dh) ** -0.5)),
        }
    _A_in = _A_setup()

    def _B_setup():
        B, S, D, F = 8, 1, 512, 1376
        return {
            "x": _w((lambda *s: torch.randn(*s, dtype=torch.bfloat16) * 0.05)(B, S, D)),
            "w1": _w((lambda *s: torch.randn(*s, dtype=torch.bfloat16) * 0.8)(D, F) * (D ** -0.5)),
            "b1": _w((lambda *s: torch.randn(*s, dtype=torch.bfloat16) * 0.8)(F) * 0.01),
            "w2": _w((lambda *s: torch.randn(*s, dtype=torch.bfloat16) * 0.1)(F, D) * (F ** -0.5)),
            "b2": _w((lambda *s: torch.randn(*s, dtype=torch.bfloat16) * 0.1)(D) * 0.01),
        }
    _B_in = _B_setup()

    return {
        "A_x": _A_in["x"],
        "A_k_cache": _A_in["k_cache"],
        "A_v_cache": _A_in["v_cache"],
        "A_wq": _A_in["wq"],
        "A_wo": _A_in["wo"],
        "B_x": _B_in["x"],
        "B_w1": _B_in["w1"],
        "B_b1": _B_in["b1"],
        "B_w2": _B_in["w2"],
        "B_b2": _B_in["b2"],
    }

def reference(A_x, A_k_cache, A_v_cache, A_wq, A_wo, B_x, B_w1, B_b1, B_w2, B_b2):
    def _A_ref(x, k_cache, v_cache, wq, wo):
        B, Sq, D = x.shape
        Hq, Dh = 32, 128
        Hkv, Sk = k_cache.shape[1], k_cache.shape[2]
        W = min(4096, max(256, Sk // 4))
        rep = Hq // Hkv
        q = (lambda x, *d: x.permute(*d))((x @ wq).reshape(B, Sq, Hq, Dh), 0, 2, 1, 3)
        k = (lambda x, n, axis: torch.repeat_interleave(x, n, dim=axis))(k_cache[:, :, Sk - W:, :], rep, axis=1)
        v = (lambda x, n, axis: torch.repeat_interleave(x, n, dim=axis))(v_cache[:, :, Sk - W:, :], rep, axis=1)
        scores = torch.einsum("bhqd,bhkd->bhqk", q, k) * (Dh ** -0.5)
        p = _softmax(scores, axis=-1)
        o = torch.einsum("bhqk,bhkd->bhqd", p, v)
        return (lambda x, *d: x.permute(*d))(o, 0, 2, 1, 3).reshape(B, Sq, Hq * Dh) @ wo

    def _B_ref(x, w1, b1, w2, b2):
        h = torch.einsum("bsd,df->bsf", x, w1) + b1
        h = _gelu(h)
        return torch.einsum("bsf,fd->bsd", h, w2) + b2

    x = A_x
    h = x + _A_ref(_layernorm(x, axis=-1), A_k_cache, A_v_cache, A_wq, A_wo)
    h2 = h + _B_ref(_layernorm(h, axis=-1), B_w1, B_b1, B_w2, B_b2)
    return h2
```

```python
import re

TRANS = ('v_exp_f32', 'v_log_f32', 'v_rcp_f32', 'v_rsq_f32', 'v_sqrt_f32', 'v_sin_f32', 'v_cos_f32')

def expand(op):
    op = op.strip()
    op = re.sub(r'^-', '', op)
    m = re.match(r'^abs\((.*)\)$', op) or re.match(r'^\|(.*)\|$', op)
    if m: op = m.group(1)
    m = re.match(r'^([vsa])(\d+)$', op)
    if m: return {op}
    m = re.match(r'^([vsa])\[(\d+):(\d+)\]$', op)
    if m: return {f'{m.group(1)}{i}' for i in range(int(m.group(2)), int(m.group(3)) + 1)}
    if op in ('vcc', 'vcc_lo', 'vcc_hi'): return {'vcc'}
    if op in ('exec', 'exec_lo', 'exec_hi'): return {'exec'}
    if op == 'm0': return {'m0'}
    return set()

class Ins:
    def __init__(self, text):
        self.text = text
        t = text.split(';')[0].strip()
        self.label = t.endswith(':')
        self.directive = t.startswith('.') or t == ''
        self.mn = t.split()[0] if t else ''
        rest = t[len(self.mn):].strip()
        ops = []; depth = 0; cur = ''
        for ch in rest:
            if ch in '[(': depth += 1
            if ch in '])': depth -= 1
            if ch == ',' and depth == 0: ops.append(cur.strip()); cur = ''
            else: cur += ch
        if cur.strip(): ops.append(cur.strip())
        self.mods = ''
        if ops:
            parts = ops[-1].split(None, 1)
            ops[-1] = parts[0]
            if len(parts) > 1: self.mods = parts[1]
        self.ops = ops
        mn = self.mn
        self.valu = mn.startswith('v_')
        self.mfma = mn.startswith('v_mfma') or mn.startswith('v_smfmac')
        self.dot = mn.startswith('v_dot')
        self.trans = any(mn.startswith(x) for x in TRANS)
        self.dpp = '_dpp' in mn or any(k in self.mods for k in ('row_', 'quad_perm', 'wave_'))
        self.permlane = mn.startswith('v_permlane')
        self.readlane = mn.startswith('v_readlane') or mn.startswith('v_readfirstlane')
        self.vmem = mn.startswith(('buffer_', 'global_', 'flat_'))
        self.ds = mn.startswith('ds_')
        self.salu = mn.startswith('s_')
        self.store = self.vmem and ('store' in mn or 'atomic' in mn)
        self.wide_store = self.vmem and 'store' in mn and ('x3' in mn or 'x4' in mn)
        self.W = set(); self.R = set()
        E = [expand(o) for o in ops]
        self.E = E
        if self.label or self.directive: return
        if self.mfma:
            self.W = E[0]; self.A = E[1]; self.B = E[2]; self.C = E[3] if not mn.startswith('v_smfmac') else E[0]
            self.R = E[1] | E[2] | E[3] | self.C
        elif self.valu:
            if self.permlane and 'swap' in mn:
                self.W = E[0] | E[1]; self.R = E[0] | E[1]
            elif mn.startswith(('v_add_co', 'v_sub_co', 'v_addc_co', 'v_subb_co', 'v_div_scale', 'v_mad_u64')):
                self.W = E[0] | E[1]
                for e in E[2:]: self.R |= e
            else:
                self.W = E[0]
                for e in E[1:]: self.R |= e
                if mn.startswith(('v_fmac', 'v_dot2c', 'v_writelane')) or self.dpp or 'sdwa' in mn: self.R |= E[0]
                if mn.startswith('v_cmpx'): self.W |= {'exec'}
        elif self.vmem:
            if 'lds' in self.mods.split() or 'load_lds' in mn:
                for e in E: self.R |= e
                self.R |= {'m0'}
            elif 'load' in mn:
                self.W = E[0]
                for e in E[1:]: self.R |= e
            elif 'atomic' in mn and 'sc0' in self.mods.split():
                self.W = E[0]
                for e in E: self.R |= e
            else:
                for e in E: self.R |= e
            if self.wide_store:
                self.data = E[0] if mn.startswith('buffer_') else E[1]
        elif self.ds:
            if 'read' in mn or 'permute' in mn or 'swizzle' in mn or '_rtn' in mn:
                self.W = E[0]
                for e in E[1:]: self.R |= e
            else:
                for e in E: self.R |= e
        elif self.salu:
            if mn.startswith(('s_cmp', 's_bitcmp', 's_waitcnt', 's_nop', 's_barrier', 's_branch', 's_cbranch', 's_endpgm', 's_sleep', 's_setprio')):
                for e in E: self.R |= e
            else:
                if E: self.W = E[0]
                for e in E[1:]: self.R |= e
                if 'saveexec' in mn: self.W |= {'exec'}
    def slots(self):
        if self.label or self.directive: return 0
        if self.mn == 's_nop': return int(self.ops[0], 0) + 1
        return 1
    def passes(self):
        if '16x16x32' in self.mn or '16x16x64' in self.mn or '16x16x16' in self.mn: return 4
        if '32x32x16' in self.mn or '32x32x8' in self.mn: return 8
        if '4x4x4' in self.mn: return 2
        if '16x16x4_f32' in self.mn: return 8
        return 16

def isv(r): return r[0] in 'va' and r != 'vcc'
def iss(r): return r[0] == 's' or r == 'vcc'

def need(p, c):
    n = 0
    pv = {r for r in p.W if isv(r)}
    ps = {r for r in p.W if iss(r)}
    if p.mfma:
        ps_ = p.passes()
        tabAB = {2: 5, 4: 8, 8: 12, 16: 20}[ps_]
        tabC = {2: 4, 4: 6, 8: 10, 16: 18}[ps_]
        tabWAR = {2: 1, 4: 3, 8: 7, 16: 15}[ps_]
        if c.mfma:
            if pv & (c.A | c.B): n = max(n, tabAB)
            if pv & c.C:
                if c.C == pv and c.passes() == ps_: n = max(n, 2 if ps_ == 2 else 0)
                else: n = max(n, tabC)
            elif pv & c.W: n = max(n, tabAB)
        elif c.valu or c.vmem or c.ds:
            if pv & (c.R | c.W): n = max(n, tabAB)
            if c.valu and (p.C & c.W): n = max(n, tabWAR)
    elif p.valu:
        if c.mfma and (pv & c.R): n = max(n, 3 if p.dot else 2)
        if c.valu and c.dpp and (pv & c.R): n = max(n, 2)
        if c.valu and c.permlane and (pv & c.R): n = max(n, 2)
        if c.readlane and (pv & c.R): n = max(n, 1)
        if p.trans and c.valu and (pv & c.R): n = max(n, 1)
        if 'sdwa' in p.mn and c.valu and (pv & (c.R | c.W)): n = max(n, 1)
        if p.dot and (c.valu or c.vmem or c.ds):
            if c.mn == p.mn:
                srcab = c.E[1] | c.E[2]
                if pv & srcab: n = max(n, 3)
            elif pv & (c.R | c.W): n = max(n, 3)
        if ps:
            if c.valu and (ps & c.R): n = max(n, 4 if (c.readlane or c.mn.startswith('v_writelane')) else 2)
            if c.vmem and (ps & c.R): n = max(n, 5)
            if c.salu and (ps & c.R): n = max(n, 1)
            if c.mn.startswith('s_cbranch_vcc') and 'vcc' in ps: n = max(n, 1)
        if 'exec' in p.W:
            if c.dpp: n = max(n, 5)
            if c.mfma or c.readlane or c.permlane: n = max(n, 4)
    elif p.salu:
        if 'm0' in p.W and c.vmem and 'm0' in c.R: n = max(n, 1)
    if p.wide_store:
        if c.valu and (p.data & c.W): n = max(n, 2)
        elif (c.vmem or c.ds) and (p.data & c.W): n = max(n, 1)
    return n

class Asm:
    def __init__(self):
        self.L = []
    def __call__(self, text):
        for line in text.split('\n'):
            if line.strip(): self.L.append(line.strip())
    def finish(self):
        out = []
        hist = []
        npad = 0
        for line in self.L:
            if line.startswith(';'):
                out.append(line); continue
            c = Ins(line)
            if not (c.label or c.directive):
                dist = 0; req = 0
                for p in reversed(hist):
                    if dist > 24: break
                    k = need(p, c) - dist
                    if k > req: req = k
                    dist += p.slots()
                while req > 0:
                    k = min(req, 16)
                    nop = Ins(f's_nop {k-1}')
                    out.append('    ' + nop.text); hist.append(nop); req -= k; npad += k
                hist.append(c)
                out.append('    ' + line)
            else:
                out.append(line)
        self.npad = npad
        return '\n'.join(out) + '\n'
```

```python
import sys, struct
from asmlib import Asm
NAME = 'sequential_preLN__sliding_block_cached__dense_activation_gelu__decode'

def f2u(x): return '0x%08x' % struct.unpack('<I', struct.pack('<f', x))[0]

HEADER = open('cdna_kernels/' + NAME + '.s.ref').read().split('; Override launch')[0] if __import__('os').path.exists('cdna_kernels/' + NAME + '.s.ref') else ''

def gen(stamps=False, opt=None):
    opt = opt or {}
    a = Asm()
    DPPF = 'row_mask:0xf bank_mask:0xf'
    RING = 128
    WA = 64
    def ring(i): return f'v[{RING+4*i}:{RING+4*i+3}]'
    def ringr(i, r): return f'v{RING+4*i+r}'
    def wa(i): return f'v[{WA+4*i}:{WA+4*i+3}]'
    VKOFF, VWQ, VWO, VW1, VW2, VPUB, VGA, VGB = 'v1', 'v2', 'v3', 'v4', 'v5', 'v6', 'v7', 'v8'
    VL, VG, VC = 'v9', 'v10', 'v11'
    M = ['v12', 'v13', 'v14', 'v15']
    SEL = ['v16', 'v17', 'v18', 'v19']
    XR, B1R, B2R, CNT = 'v20', 'v21', 'v22', 'v23'
    Q = ['v24', 'v25', 'v26', 'v27']
    ACC = 28
    A0, A1 = 32, 36
    C0, C1 = 'v40', 'v41'
    T = [f'v{i}' for i in range(44, 64)]
    VLDS = 'v42'; VT = 'v43'
    acc = f'v[{ACC}:{ACC+3}]'
    sW, sB, sH = 's3', 's30', 's31'
    SK, SV, SWQ, SWO, SW1, SW2, SSL, SB1 = 32, 36, 40, 44, 48, 52, 56, 60
    def srd(n): return f's[{n}:{n+3}]'
    sKo, sWo, sT0, sT1, sT2, sT3 = 's64', 's65', 's66', 's67', 's68', 's69'
    sSLOT = 's70'; sPEND = 's71'; sIT = 's72'; sW1o = 's73'; sW2o = 's74'
    sMB0, sMB1 = 's[76:77]', 's[78:79]'
    STB = 80
    nst = [0]
    def stamp():
        if stamps:
            a(f's_memrealtime s[{STB+2*nst[0]}:{STB+2*nst[0]+1}]')
            nst[0] += 1
    L_QP, L_SM, L_ST, L_ZP, L_H = 0, 4096, 4096 + 64, 4096 + 256, 4096 + 256 + 4096
    L_OP = 12288
    LDS = 16384

    def wave_reduce(op, x, sdst):
        for n in (8, 4, 2, 1):
            a(f'{op}_dpp {x}, {x}, {x} row_ror:{n} {DPPF}')
        a(f'{op}_dpp {x}, {x}, {x} row_bcast:15 row_mask:0xa bank_mask:0xf')
        a(f'{op}_dpp {x}, {x}, {x} row_bcast:31 row_mask:0xc bank_mask:0xf')
        a(f'v_readlane_b32 {sdst}, {x}, 63')
    def bf16r(dst, src):
        a(f'v_cvt_pk_bf16_f32 {dst}, {src}, {src}')
        a(f'v_and_b32 {dst}, 0xffff0000, {dst}')
    def ln_finish(mean, var, x, dst_is_dup_or_f32, tmp, tmp2):
        bf16r(mean, mean)
        bf16r(var, var)
        a(f'v_add_f32 {var}, {f2u(1e-5)}, {var}')
        bf16r(var, var)
        a(f'v_sqrt_f32 {var}, {var}')
        a(f'v_sub_f32 {x}, {x}, {mean}')
        bf16r(var, var)
        bf16r(x, x)
        a(f'v_rcp_f32 {var}, {var}')
        a(f'v_mul_f32 {x}, {x}, {var}')
    def gemv4(src, lane, B, first, k):
        A = A0 if k % 2 == 0 else A1
        for r in range(4):
            a(f'v_and_b32_dpp v{A+r}, {src}, {M[r]} row_newbcast:{lane} {DPPF}')
        return f'v_mfma_f32_16x16x32_bf16 {acc}, v[{A}:{A+3}], {B}, {"0" if first else acc}'
    def gemv8_build(src, lane, k):
        A = A0 if k % 2 == 0 else A1
        x = T[18 + k % 2]
        a(f'v_mov_b32_dpp {x}, {src} row_newbcast:{lane} {DPPF}')
        for r in range(4):
            a(f'v_perm_b32 v{A+r}, {x}, {x}, {SEL[r]}')
    def gemv8(src, Bs):
        n = len(Bs)
        gemv8_build(src, 0, 0)
        for k in range(n):
            if k + 1 < n: gemv8_build(src, k + 1, k + 1)
            A = A0 if k % 2 == 0 else A1
            a(f'v_mfma_f32_16x16x32_bf16 {acc}, v[{A}:{A+3}], {Bs[k]}, {"0" if k == 0 else acc}')
    def rs4(R):
        a(f'v_permlane32_swap_b32 {R[0]}, {R[2]}')
        a(f'v_permlane32_swap_b32 {R[1]}, {R[3]}')
        a(f'v_add_f32 {R[0]}, {R[0]}, {R[2]}')
        a(f'v_add_f32 {R[1]}, {R[1]}, {R[3]}')
        a(f'v_permlane16_swap_b32 {R[0]}, {R[1]}')
        a(f'v_add_f32 {R[0]}, {R[0]}, {R[1]}')
    def publish(off):
        R = [f'v{ACC+r}' for r in range(4)]
        a(f'v_permlane32_swap_b32 {R[0]}, {R[2]}')
        a(f'v_permlane32_swap_b32 {R[1]}, {R[3]}')
        a(f'v_add_f32_dpp {R[0]}, {R[2]}, {R[0]} row_ror:8 {DPPF}')
        a(f'v_add_f32_dpp {R[1]}, {R[3]}, {R[1]} row_ror:8 {DPPF}')
        a(f'v_min_u32 {R[0]}, -2, {R[0]}')
        a(f'v_min_u32 {R[1]}, -2, {R[1]}')
        a('s_mov_b32 exec_lo, 0x00ff00ff')
        a('s_mov_b32 exec_hi, 0x00ff00ff')
        a(f'buffer_store_dwordx2 v[{ACC}:{ACC+1}], {VPUB}, {srd(SSL)}, {sSLOT} offen offset:{off} sc1')
        a('s_mov_b64 exec, -1')

    a(f'; @launch grid=(256,1,1) block=(512,1,1) lds={LDS}')
    a('.amdgcn_target "amdgcn-amd-amdhsa--gfx950"')
    a('.text')
    a(f'.globl {NAME}_kernel')
    a('.p2align 8')
    a(f'.type {NAME}_kernel,@function')
    a(f'{NAME}_kernel:')
    a('s_cmp_ge_u32 s2, 256')
    a('s_cbranch_scc1 L_end')
    a('s_load_dwordx16 s[4:19], s[0:1], 0')
    a('s_load_dwordx8 s[20:27], s[0:1], 64')
    a('s_load_dwordx2 s[28:29], s[0:1], 96')
    stamp()
    a(f'v_lshrrev_b32 {VT}, 6, v0')
    a(f'v_and_b32 {VL}, 63, v0')
    a(f'v_readfirstlane_b32 {sW}, {VT}')
    a(f'v_lshlrev_b32 {VKOFF}, 4, v0')
    a(f'v_lshrrev_b32 {VG}, 4, {VL}')
    a(f'v_and_b32 {VC}, 15, v0')
    a(f's_lshr_b32 {sB}, s2, 5')
    a(f's_and_b32 {sH}, s2, 31')
    a(f'v_lshlrev_b32 {VWQ}, 13, {VG}')
    a(f'v_lshl_add_u32 {VWQ}, {VC}, 4, {VWQ}')
    a(f's_lshl_b32 {sT0}, {sB}, 10')
    a(f'v_lshl_add_u32 {T[0]}, {VL}, 4, {sT0}')
    a(f'v_lshl_add_u32 {T[2]}, {VC}, 2, {VG}')
    a(f'v_lshl_add_u32 {T[3]}, {VT}, 6, {T[2]}')
    a(f'v_lshl_add_u32 {T[1]}, {T[3]}, 1, {sT0}')
    a(f'v_lshlrev_b32 {VPUB}, 3, v0')
    a(f'v_mov_b32 {T[4]}, -1')
    a(f'v_mov_b32 {T[5]}, -1')
    a(f's_lshl_b32 {sT1}, s2, 20')
    a(f's_add_u32 {sT1}, {sT1}, 0xC0000')
    a(f's_lshl_b32 {sSLOT}, {sH}, 12')
    a(f's_lshl_b32 {sT2}, {sB}, 17')
    a(f's_lshl_b32 {sWo}, {sW}, 19')
    a(f's_lshl_b32 {sT3}, {sH}, 8')
    a(f's_add_u32 {sWo}, {sWo}, {sT3}')
    a(f's_mov_b32 {sKo}, 0')
    for n, sz in ((SK, 0x40000), (SV, 0x40000), (SWQ, 0x400000), (SWO, 0x400000), (SW1, 512 * 2752), (SW2, 1376 * 1024), (SSL, 0x20000), (SB1, 2752)):
        a(f's_mov_b32 s{n+2}, {sz:#x}')
        a(f's_mov_b32 s{n+3}, 0x20000')
    a('s_waitcnt lgkmcnt(0)')
    a(f's_add_u32 s{SK}, s6, {sT1}')
    a(f's_addc_u32 s{SK+1}, s7, 0')
    a(f's_mov_b32 s{SWQ}, s10')
    a(f's_mov_b32 s{SWQ+1}, s11')
    vm = []
    def issue(tag, text):
        a(text); vm.append(tag)
    def waitfor(tag):
        if tag not in vm: return
        i = vm.index(tag)
        n = len(vm) - 1 - i
        a(f's_waitcnt vmcnt({n})')
        del vm[:i + 1]
    def loadK(i):
        issue(f'K{i}', f'buffer_load_dwordx4 {ring(i)}, {VKOFF}, {srd(SK)}, {sKo} offen nt')
        a(f's_add_u32 {sKo}, {sKo}, 8192')
    def loadV(i):
        issue(f'V{i}', f'buffer_load_dwordx4 {ring(i)}, {VKOFF}, {srd(SV)}, {sKo} offen nt')
        a(f's_add_u32 {sKo}, {sKo}, 8192')
    issue('X8', f'global_load_dwordx4 v[{T[8][1:]}:{T[11][1:]}], {T[0]}, s[4:5]')
    issue('XR', f'global_load_ushort {XR}, {T[1]}, s[4:5]')
    loadK(0)
    a(f's_add_u32 s{SSL}, s28, {sT2}')
    a(f's_addc_u32 s{SSL+1}, s29, 0')
    issue('MK', f'buffer_store_dwordx2 v[{T[4][1:]}:{T[5][1:]}], {VPUB}, {srd(SSL)}, {sSLOT} offen sc1')
    for t in range(16):
        issue(f'Q{t}', f'buffer_load_dwordx4 {wa(t)}, {VWQ}, {srd(SWQ)}, {sWo} offen nt')
        a(f's_add_u32 {sWo}, {sWo}, 32768')
        if t + 1 < 16: loadK(t + 1)
    for i in range(16, 32): loadK(i)
    a(f's_mov_b32 {sKo}, 0')
    a(f's_add_u32 s{SV}, s8, {sT1}')
    a(f's_addc_u32 s{SV+1}, s9, 0')
    for n, p in ((SWO, 12), (SW1, 16), (SW2, 20), (SB1, 18)):
        a(f's_mov_b32 s{n}, s{p}')
        a(f's_mov_b32 s{n+1}, s{p+1}')
    a('s_mov_b32 s76, 0xaaaaaaaa'); a('s_mov_b32 s77, 0xaaaaaaaa')
    a('s_mov_b32 s78, 0xcccccccc'); a('s_mov_b32 s79, 0xcccccccc')
    E7, HALF = T[6], T[7]
    a(f'v_and_b32 {E7}, 7, v0')
    a(f'v_bfe_u32 {HALF}, v0, 3, 1')
    a(f'v_and_b32 {T[12]}, 1, v0')
    a(f'v_lshlrev_b32 {T[12]}, 4, {T[12]}')
    a(f'v_mov_b32 {T[13]}, 0xffff')
    a(f'v_lshlrev_b32 {T[13]}, {T[12]}, {T[13]}')
    a(f'v_lshrrev_b32 {T[14]}, 1, {VC}')
    for r in range(4):
        a(f'v_cmp_eq_u32 vcc, {r}, {T[14]}')
        a(f'v_cndmask_b32 {M[r]}, 0, {T[13]}, vcc')
    a(f'v_mul_u32_u24 {T[13]}, 0x0202, {HALF}')
    a(f'v_add_u32 {T[13]}, 0x0100, {T[13]}')
    a(f'v_lshlrev_b32 {T[13]}, {T[12]}, {T[13]}')
    a(f'v_mov_b32 {T[15]}, 0x0c0c0000')
    a(f'v_lshrrev_b32 {T[15]}, {T[12]}, {T[15]}')
    a(f'v_or_b32 {T[13]}, {T[13]}, {T[15]}')
    a(f'v_lshrrev_b32 {T[14]}, 1, {E7}')
    a(f'v_mov_b32 {T[15]}, 0x0c0c0c0c')
    for r in range(4):
        a(f'v_cmp_eq_u32 vcc, {r}, {T[14]}')
        a(f'v_cndmask_b32 {SEL[r]}, {T[15]}, {T[13]}, vcc')
    a(f'v_lshlrev_b32 {T[12]}, 7, {VT}')
    a(f'v_lshl_add_u32 {T[12]}, {E7}, 4, {T[12]}')
    a(f'v_lshl_add_u32 {VWO}, {VG}, 5, {HALF}')
    a(f'v_lshl_add_u32 {VWO}, {VWO}, 10, {T[12]}')
    a(f'v_mul_u32_u24 {VW2}, 24, {HALF}')
    a(f'v_add_u32 {VW2}, {VW2}, {VG}')
    a(f'v_lshl_add_u32 {VW2}, {VW2}, 10, {T[12]}')
    a(f'v_lshl_add_u32 {VW1}, {HALF}, 5, {VG}')
    a(f'v_lshl_add_u32 {VW1}, {VT}, 6, {VW1}')
    a(f'v_mul_u32_u24 {VW1}, 2752, {VW1}')
    a(f'v_lshl_add_u32 {VW1}, {E7}, 4, {VW1}')
    a(f's_mul_i32 {sT0}, {sH}, 6')
    a(f's_sub_i32 {sT0}, 172, {sT0}')
    a(f's_min_i32 {sT0}, {sT0}, 6')
    a(f'v_cmp_gt_i32 vcc, {sT0}, {E7}')
    a(f'v_mov_b32 {T[13]}, 0x7fff0000')
    a(f'v_cndmask_b32 {VW1}, {T[13]}, {VW1}, vcc')
    a(f's_mul_i32 {sW1o}, {sH}, 96')
    a(f's_mul_i32 {sW2o}, {sH}, {48*1024}')
    a(f'v_lshlrev_b32 {VGA}, 15, {VG}')
    a(f'v_lshl_add_u32 {VGA}, {VT}, 8, {VGA}')
    a(f'v_lshl_add_u32 {VGA}, {VC}, 4, {VGA}')
    a(f'v_lshrrev_b32 {VGB}, 2, {VL}')
    a(f'v_lshlrev_b32 {VGB}, 12, {VGB}')
    a(f'v_and_b32 {T[13]}, 3, v0')
    a(f'v_lshl_add_u32 {VGB}, {T[13]}, 4, {VGB}')
    waitfor('XR')
    X = [T[0], T[1], T[16], T[17], T[12], T[13], T[14], T[15]]
    for k in range(4):
        a(f'v_lshlrev_b32 {X[2*k]}, 16, {T[8+k]}')
        a(f'v_and_b32 {X[2*k+1]}, 0xffff0000, {T[8+k]}')
    a(f'v_lshlrev_b32 {XR}, 16, {XR}')
    S = T[8]
    a(f'v_add_f32 {T[8]}, {X[0]}, {X[1]}'); a(f'v_add_f32 {T[9]}, {X[2]}, {X[3]}')
    a(f'v_add_f32 {T[10]}, {X[4]}, {X[5]}'); a(f'v_add_f32 {T[11]}, {X[6]}, {X[7]}')
    a(f'v_add_f32 {T[8]}, {T[8]}, {T[9]}'); a(f'v_add_f32 {T[10]}, {T[10]}, {T[11]}')
    a(f'v_add_f32 {T[8]}, {T[8]}, {T[10]}')
    wave_reduce('v_add_f32', T[8], sT0)
    a(f'v_mov_b32 {T[9]}, {f2u(1.0/512)}')
    a(f'v_mul_f32 {T[9]}, {sT0}, {T[9]}')
    for k in range(8): a(f'v_sub_f32 {X[k]}, {X[k]}, {T[9]}')
    a(f'v_mul_f32 {T[8]}, {X[0]}, {X[0]}')
    for k in range(1, 8): a(f'v_fmac_f32 {T[8]}, {X[k]}, {X[k]}')
    wave_reduce('v_add_f32', T[8], sT0)
    a(f'v_mov_b32 {T[10]}, {f2u(1.0/512)}')
    a(f'v_mul_f32 {T[10]}, {sT0}, {T[10]}')
    a(f'v_mov_b32 {T[11]}, {XR}')
    ln_finish(T[9], T[10], T[11], None, None, None)
    XN = T[11]
    a(f'v_cvt_pk_bf16_f32 {XN}, {XN}, {XN}')
    a(f'v_lshlrev_b32 {VLDS}, 9, {VT}')
    a(f'v_lshl_add_u32 {VLDS}, {VC}, 5, {VLDS}')
    a(f'v_lshl_add_u32 {VLDS}, {VG}, 4, {VLDS}')
    for t in range(16):
        m = gemv4(XN, t, wa(t), t == 0, t)
        waitfor(f'Q{t}')
        a(m)
    a(f'v_lshlrev_b32 {VPUB}, 8, {VT}')
    a(f'v_lshl_add_u32 {VPUB}, {VC}, 5, {VPUB}')
    a(f'v_and_b32 {T[0]}, 1, {VG}')
    a(f'v_lshl_add_u32 {VPUB}, {T[0]}, 4, {VPUB}')
    a(f'v_lshrrev_b32 {T[0]}, 1, {VG}')
    a(f'v_lshl_add_u32 {VPUB}, {T[0]}, 3, {VPUB}')
    a(f's_lshl_b32 {sWo}, {sH}, 17')
    a('s_mov_b32 exec_hi, 0')
    a(f'ds_write_b128 {VLDS}, {acc} offset:{L_QP}')
    a('s_mov_b32 exec_hi, -1')
    a(f'v_lshlrev_b32 {T[0]}, 5, {VC}')
    a('s_waitcnt lgkmcnt(0)')
    a('s_barrier')
    stamp()
    a(f's_cmp_lg_u32 {sW}, 0')
    a('s_cbranch_scc1 L_nosig')
    a(f's_lshl_b32 {sT0}, {sB}, 5')
    a(f'v_mov_b32 {T[1]}, {sT0}')
    a(f'v_mov_b32 {T[4]}, 1')
    a('s_mov_b64 exec, 1')
    a(f'global_atomic_add {T[1]}, {T[4]}, s[26:27] sc1')
    a('s_mov_b64 exec, -1')
    a('L_nosig:')
    for p in range(8):
        a(f'ds_read_b128 {wa(2*p)}, {T[0]} offset:{L_QP + p*512}')
        a(f'ds_read_b128 {wa(2*p+1)}, {T[0]} offset:{L_QP + p*512 + 16}')
    a('s_waitcnt lgkmcnt(0)')
    for step in (4, 2, 1):
        for p in range(step):
            for e in range(8):
                a(f'v_add_f32 v{WA+8*p+e}, v{WA+8*p+e}, v{WA+8*(p+step)+e}')
    for k in range(4):
        a(f'v_cvt_pk_bf16_f32 {Q[k]}, v{WA+2*k}, v{WA+2*k+1}')
    lane_of = {}
    def qk_group(base, C):
        U = [T[8], T[9], T[10], T[11]]
        for i in range(16):
            idx = base + i
            waitfor(f'K{idx}')
            Sreg = [U[i // 4], T[12], T[13], T[14]][i % 4]
            a(f'v_dot2_f32_bf16 {Sreg}, {ringr(idx,0)}, {Q[0]}, 0')
            for r in range(1, 4):
                a(f'v_dot2_f32_bf16 {Sreg}, {ringr(idx,r)}, {Q[r]}, {Sreg}')
            loadV(idx)
            if idx < 16:
                issue(f'O{idx}', f'buffer_load_dwordx4 {wa(idx)}, {VWO}, {srd(SWO)}, {sWo} offen nt')
                a(f's_add_u32 {sWo}, {sWo}, 2048')
            if idx == 16:
                a(f's_lshl_b32 {sT0}, {sB}, 5')
                a(f'v_mov_b32 {T[1]}, {sT0}')
                issue('CNT', f'global_load_dword {CNT}, {T[1]}, s[26:27] sc1')
            if i % 2 == 1:
                sa, sb = (U[i // 4], T[12]) if i % 4 == 1 else (T[13], T[14])
                a(f'v_add_f32_dpp {sa}, {sa}, {sa} row_ror:8 row_mask:0xf bank_mask:0x3')
                a(f'v_add_f32_dpp {sa}, {sb}, {sb} row_ror:8 row_mask:0xf bank_mask:0xc')
            if i % 4 == 3:
                ta, tb = U[i // 4], T[13]
                a(f'v_add_f32_dpp {ta}, {ta}, {ta} row_half_mirror row_mask:0xf bank_mask:0x5')
                a(f'v_add_f32_dpp {ta}, {tb}, {tb} row_half_mirror row_mask:0xf bank_mask:0xa')
            lane_of[idx] = ((i & 1) << 3) | (((i >> 1) & 1) << 2) | ((i >> 2) & 1) | (((i >> 3) & 1) << 1)
        for u in U: a(f'v_add_f32_dpp {u}, {u}, {u} quad_perm:[1,0,3,2] {DPPF}')
        a(f'v_cndmask_b32 {U[0]}, {U[0]}, {U[1]}, {sMB0}')
        a(f'v_cndmask_b32 {U[2]}, {U[2]}, {U[3]}, {sMB0}')
        for u in (U[0], U[2]): a(f'v_add_f32_dpp {u}, {u}, {u} quad_perm:[2,3,0,1] {DPPF}')
        a(f'v_cndmask_b32 {C}, {U[0]}, {U[2]}, {sMB1}')
    qk_group(0, C0)
    qk_group(16, C1)
    stamp()
    a(f's_mul_i32 {sT0}, {sH}, 48')
    a(f'v_add_lshl_u32 {T[0]}, {T[2]}, {sT0}, 1')
    issue('B1', f'buffer_load_ushort {B1R}, {T[0]}, {srd(SB1)}, 0 offen')
    a(f'v_and_b32 {T[1]}, 15, {T[2]}')
    a(f's_lshl_b32 {sT0}, {sH}, 4')
    a(f'v_add_lshl_u32 {T[4]}, {T[1]}, {sT0}, 1')
    issue('B2', f'global_load_ushort {B2R}, {T[4]}, s[22:23]')
    LOG2E = 1.4426950408889634
    for C in (C0, C1):
        bf16r(C, C)
        a(f'v_mul_f32 {C}, {f2u(128 ** -0.5)}, {C}')
        bf16r(C, C)
    a(f'v_max_f32 {T[8]}, {C0}, {C1}')
    wave_reduce('v_max_f32', T[8], sT0)
    a(f'v_subrev_f32 {T[8]}, {sT0}, {C0}')
    a(f'v_subrev_f32 {T[9]}, {sT0}, {C1}')
    a(f'v_mul_f32 {T[8]}, {f2u(LOG2E)}, {T[8]}')
    a(f'v_mul_f32 {T[9]}, {f2u(LOG2E)}, {T[9]}')
    a(f'v_exp_f32 {T[8]}, {T[8]}')
    a(f'v_exp_f32 {T[9]}, {T[9]}')
    a(f'v_add_f32 {T[8]}, {T[8]}, {T[9]}')
    wave_reduce('v_add_f32', T[8], sT1)
    a(f'v_mov_b32 {T[8]}, {sT0}')
    a(f'v_mov_b32 {T[9]}, {sT1}')
    a(f'v_lshlrev_b32 {T[10]}, 3, {VT}')
    a(f'ds_write_b64 {T[10]}, v[{T[8][1:]}:{T[9][1:]}] offset:{L_SM}')
    a(f'v_lshlrev_b32 {T[10]}, 3, {E7}')
    a('s_waitcnt lgkmcnt(0)')
    a('s_barrier')
    a(f'ds_read_b64 v[{T[8][1:]}:{T[9][1:]}], {T[10]} offset:{L_SM}')
    a('s_waitcnt lgkmcnt(0)')
    def red8(op, x):
        a(f'{op}_dpp {x}, {x}, {x} row_half_mirror {DPPF}')
        a(f'{op}_dpp {x}, {x}, {x} quad_perm:[1,0,3,2] {DPPF}')
        a(f'{op}_dpp {x}, {x}, {x} quad_perm:[2,3,0,1] {DPPF}')
    a(f'v_mov_b32 {T[10]}, {T[8]}')
    red8('v_max_f32', T[10])
    a(f'v_sub_f32 {T[8]}, {T[8]}, {T[10]}')
    a(f'v_sub_f32 {C0}, {C0}, {T[10]}')
    a(f'v_sub_f32 {C1}, {C1}, {T[10]}')
    a(f'v_mul_f32 {T[8]}, {f2u(LOG2E)}, {T[8]}')
    a(f'v_mul_f32 {C0}, {f2u(LOG2E)}, {C0}')
    a(f'v_mul_f32 {C1}, {f2u(LOG2E)}, {C1}')
    a(f'v_exp_f32 {T[8]}, {T[8]}')
    a(f'v_exp_f32 {C0}, {C0}')
    a(f'v_exp_f32 {C1}, {C1}')
    a(f'v_mul_f32 {T[9]}, {T[9]}, {T[8]}')
    red8('v_add_f32', T[9])
    a(f'v_rcp_f32 {T[9]}, {T[9]}')
    a(f'v_mul_f32 {C0}, {C0}, {T[9]}')
    a(f'v_mul_f32 {C1}, {C1}, {T[9]}')
    a(f'v_cvt_pk_bf16_f32 {C0}, {C0}, {C0}')
    a(f'v_cvt_pk_bf16_f32 {C1}, {C1}, {C1}')
    stamp()
    for i in range(32):
        m = gemv4(C0 if i < 16 else C1, lane_of[i], ring(i), i == 0, i)
        waitfor(f'V{i}')
        a(m)
        j = i - 1
        if 0 <= j < 8:
            issue(f'W1_{j}', f'buffer_load_dwordx4 {ring(j)}, {VW1}, {srd(SW1)}, {sW1o} offen nt')
            a(f's_add_u32 {sW1o}, {sW1o}, {4*2752}')
        elif 8 <= j < 14:
            issue(f'W2_{j-8}', f'buffer_load_dwordx4 {ring(j)}, {VW2}, {srd(SW2)}, {sW2o} offen nt')
            a(f's_add_u32 {sW2o}, {sW2o}, 4096')
        if i == 17:
            a(f'v_readfirstlane_b32 {sT0}, {CNT}')
            a(f's_cmp_eq_u32 {sT0}, 32')
            a('s_cbranch_scc1 L_cntok')
            a(f's_mov_b32 {sIT}, 0')
            a(f's_lshl_b32 {sT0}, {sB}, 5')
            a(f'v_mov_b32 {T[1]}, {sT0}')
            a('L_cntspin:')
            a(f'global_load_dword {CNT}, {T[1]}, s[26:27] sc1')
            a('s_waitcnt vmcnt(0)')
            a(f'v_readfirstlane_b32 {sT0}, {CNT}')
            a(f's_add_u32 {sIT}, {sIT}, 1')
            a(f's_cmp_gt_u32 {sIT}, 0x40000')
            a('s_cbranch_scc1 L_cntok')
            a('s_sleep 4')
            a(f's_cmp_lg_u32 {sT0}, 32')
            a('s_cbranch_scc1 L_cntspin')
            a('L_cntok:')
    stamp()
    a(f'v_lshlrev_b32 {T[0]}, 3, {VL}')
    a('s_mov_b32 exec_hi, 0')
    a(f'ds_write_b128 {VLDS}, {acc} offset:{L_OP}')
    a('s_mov_b32 exec_hi, -1')
    a('s_waitcnt lgkmcnt(0)')
    a('s_barrier')
    OB = RING + 4 * 24
    for p in range(8):
        a(f'ds_read_b64 v[{OB+2*p}:{OB+2*p+1}], {T[0]} offset:{L_OP + p*512}')
    a('s_waitcnt lgkmcnt(0)')
    for step in (4, 2, 1):
        for p in range(step):
            for e in range(2):
                a(f'v_add_f32 v{OB+2*p+e}, v{OB+2*p+e}, v{OB+2*(p+step)+e}')
    PK = T[8]
    a(f'v_cvt_pk_bf16_f32 {PK}, v{OB}, v{OB+1}')
    gemv8(PK, [wa(t) for t in range(16)])
    publish(0)
    stamp()
    GA = 16
    a(f's_mov_b32 {sPEND}, 0xff')
    a(f's_mov_b32 {sIT}, 0')
    a('L_pollA:')
    for u in range(8):
        a(f's_bitcmp1_b32 {sPEND}, {u}')
        a(f's_cbranch_scc0 L_pa_skip{u}')
        a(f's_mov_b32 {sT0}, {u*4096}')
        a(f'buffer_load_dwordx4 {ring(GA+u)}, {VGA}, {srd(SSL)}, {sT0} offen sc1')
        a(f'L_pa_skip{u}:')
    a('s_waitcnt vmcnt(0)')
    for u in range(8):
        a(f's_bitcmp1_b32 {sPEND}, {u}')
        a(f's_cbranch_scc0 L_pa_chk{u}')
        a(f'v_max3_u32 {T[0]}, {ringr(GA+u,0)}, {ringr(GA+u,1)}, {ringr(GA+u,2)}')
        a(f'v_max_u32 {T[0]}, {T[0]}, {ringr(GA+u,3)}')
        a(f'v_cmp_eq_u32 vcc, -1, {T[0]}')
        a(f's_cbranch_vccnz L_pa_chk{u}')
        a(f's_bitset0_b32 {sPEND}, {u}')
        a(f'L_pa_chk{u}:')
    a(f's_cmp_eq_u32 {sPEND}, 0')
    a('s_cbranch_scc1 L_pollA_done')
    a(f's_add_u32 {sIT}, {sIT}, 1')
    a(f's_cmp_gt_u32 {sIT}, 0x40000')
    a('s_cbranch_scc1 L_pollA_done')
    a(f's_sleep {opt.get("sleepA", 2)}')
    a('s_branch L_pollA')
    a('L_pollA_done:')
    vm.clear()
    stamp()
    for step in (4, 2, 1):
        for p in range(step):
            for e in range(4):
                a(f'v_add_f32 {ringr(GA+p,e)}, {ringr(GA+p,e)}, {ringr(GA+p+step,e)}')
    R = [ringr(GA, e) for e in range(4)]
    rs4(R)
    Hh = T[8]
    bf16r(Hh, R[0])
    a(f'v_add_f32 {Hh}, {XR}, {Hh}')
    bf16r(Hh, Hh)
    a(f'v_lshlrev_b32 {T[0]}, 2, {T[3]}')
    a(f'ds_write_b32 {T[0]}, {Hh} offset:{L_H}')
    a(f'v_mov_b32 {T[9]}, {Hh}')
    wave_reduce('v_add_f32', T[9], sT0)
    a(f'v_mov_b32 {T[10]}, {f2u(1.0/64)}')
    a(f'v_mul_f32 {T[10]}, {sT0}, {T[10]}')
    a(f'v_sub_f32 {T[9]}, {Hh}, {T[10]}')
    a(f'v_mul_f32 {T[9]}, {T[9]}, {T[9]}')
    wave_reduce('v_add_f32', T[9], sT0)
    a(f'v_mov_b32 {T[11]}, {sT0}')
    a(f'v_lshlrev_b32 {T[0]}, 3, {VT}')
    a(f'ds_write_b64 {T[0]}, v[{T[10][1:]}:{T[11][1:]}] offset:{L_ST}')
    a(f'v_lshlrev_b32 {T[0]}, 3, {E7}')
    a('s_waitcnt lgkmcnt(0)')
    a('s_barrier')
    a(f'ds_read_b64 v[{T[10][1:]}:{T[11][1:]}], {T[0]} offset:{L_ST}')
    a('s_waitcnt lgkmcnt(0)')
    a(f'v_mov_b32 {T[9]}, {T[10]}')
    red8('v_add_f32', T[9])
    a(f'v_mul_f32 {T[9]}, 0.125, {T[9]}' if False else f'v_mul_f32 {T[9]}, {f2u(0.125)}, {T[9]}')
    a(f'v_sub_f32 {T[10]}, {T[10]}, {T[9]}')
    a(f'v_mul_f32 {T[10]}, {T[10]}, {T[10]}')
    a(f'v_fmac_f32 {T[11]}, {f2u(64.0)}, {T[10]}')
    red8('v_add_f32', T[11])
    a(f'v_mul_f32 {T[11]}, {f2u(1.0/512)}, {T[11]}')
    ln_finish(T[9], T[11], Hh, None, None, None)
    a(f'v_mov_b32_dpp {T[9]}, {Hh} row_ror:8 {DPPF}')
    a(f'v_cvt_pk_bf16_f32 {PK}, {Hh}, {T[9]}')
    gemv8(PK, [ring(t) for t in range(8)])
    a(f'v_lshrrev_b32 {T[0]}, 1, {VG}')
    a(f'v_lshl_add_u32 {T[0]}, {VT}, 1, {T[0]}')
    a(f'v_lshlrev_b32 {T[0]}, 8, {T[0]}')
    a(f'v_lshl_add_u32 {T[0]}, {E7}, 5, {T[0]}')
    a(f'v_and_b32 {T[1]}, 1, {VG}')
    a(f'v_lshl_add_u32 {T[0]}, {T[1]}, 4, {T[0]}')
    a(f'v_lshlrev_b32 {T[1]}, 10, {VG}')
    a(f'v_lshl_add_u32 {T[1]}, {VC}, 4, {T[1]}')
    a('s_mov_b32 exec_lo, 0x00ff00ff')
    a('s_mov_b32 exec_hi, 0xff00ff00')
    a(f'ds_write_b128 {T[0]}, {acc} offset:{L_ZP}')
    a('s_mov_b64 exec, -1')
    a('s_waitcnt lgkmcnt(0)')
    a('s_barrier')
    for k in range(4):
        a(f'ds_read_b128 {ring(GA+k)}, {T[1]} offset:{L_ZP + k*256}')
    a(f'v_lshlrev_b32 {B1R}, 16, {B1R}')
    a('s_waitcnt lgkmcnt(0)')
    for step in (2, 1):
        for p in range(step):
            for e in range(4):
                a(f'v_add_f32 {ringr(GA+p,e)}, {ringr(GA+p,e)}, {ringr(GA+p+step,e)}')
    rs4(R)
    Z = T[8]
    bf16r(Z, R[0])
    a(f'v_add_f32 {Z}, {Z}, {B1R}')
    bf16r(Z, Z)
    KK = -2.0 * 0.7978845608028654 * LOG2E
    a(f'v_mul_f32 {T[9]}, {Z}, {Z}')
    a(f'v_mov_b32 {T[10]}, {f2u(KK)}')
    a(f'v_fmac_f32 {T[10]}, {f2u(KK * 0.044715)}, {T[9]}')
    a(f'v_mul_f32 {T[10]}, {T[10]}, {Z}')
    a(f'v_exp_f32 {T[10]}, {T[10]}')
    a(f'v_add_f32 {T[10]}, 1.0, {T[10]}')
    a(f'v_rcp_f32 {T[10]}, {T[10]}')
    a(f'v_mul_f32 {Z}, {Z}, {T[10]}')
    a(f'v_mov_b32_dpp {T[9]}, {Z} row_shl:6 {DPPF}')
    a(f'v_cvt_pk_bf16_f32 {PK}, {Z}, {T[9]}')
    gemv8(PK, [ring(8 + t) for t in range(6)])
    publish(2048)
    stamp()
    a(f's_cmp_lg_u32 {sW}, 0')
    a('s_cbranch_scc1 L_end')
    a(f'v_lshlrev_b32 {T[0]}, 1, {T[4]}')
    a(f'ds_read_b32 {Hh}, {T[0]} offset:{L_H}')
    a(f'v_lshlrev_b32 {B2R}, 16, {B2R}')
    a(f's_lshl_b32 {sT0}, {sH}, 6')
    a(f's_add_u32 {sT1}, {sT0}, 0x10000')
    a(f's_mov_b32 {sIT}, 0')
    a('L_pollB:')
    a(f'buffer_load_dwordx4 {ring(GA)}, {VGB}, {srd(SSL)}, {sT0} offen offset:2048 sc1')
    a(f'buffer_load_dwordx4 {ring(GA+1)}, {VGB}, {srd(SSL)}, {sT1} offen offset:2048 sc1')
    a(f's_add_u32 {sIT}, {sIT}, 1')
    a(f's_cmp_gt_u32 {sIT}, 0x40000')
    a('s_cbranch_scc1 L_pollB_done')
    a('s_waitcnt vmcnt(0)')
    a(f'v_max3_u32 {T[0]}, {ringr(GA,0)}, {ringr(GA,1)}, {ringr(GA,2)}')
    a(f'v_max3_u32 {T[1]}, {ringr(GA,3)}, {ringr(GA+1,0)}, {ringr(GA+1,1)}')
    a(f'v_max3_u32 {T[0]}, {T[0]}, {ringr(GA+1,2)}, {ringr(GA+1,3)}')
    a(f'v_max_u32 {T[0]}, {T[0]}, {T[1]}')
    a(f'v_cmp_eq_u32 vcc, -1, {T[0]}')
    a('s_cbranch_vccnz L_pollB')
    a('L_pollB_done:')
    a('s_waitcnt vmcnt(0) lgkmcnt(0)')
    stamp()
    for e in range(4):
        a(f'v_add_f32 {ringr(GA,e)}, {ringr(GA,e)}, {ringr(GA+1,e)}')
    rs4(R)
    a(f'v_add_f32_dpp {R[0]}, {R[0]}, {R[0]} row_ror:8 {DPPF}')
    a(f'v_add_f32_dpp {R[0]}, {R[0]}, {R[0]} row_ror:4 {DPPF}')
    bf16r(R[0], R[0])
    a(f'v_add_f32 {R[0]}, {R[0]}, {B2R}')
    bf16r(R[0], R[0])
    a(f'v_add_f32 {R[0]}, {R[0]}, {Hh}')
    a(f'v_cvt_pk_bf16_f32 {R[0]}, {R[0]}, {R[0]}')
    a(f's_lshl_b32 {sT0}, {sB}, 10')
    a(f'v_add_u32 {T[4]}, {sT0}, {T[4]}')
    a('s_mov_b32 exec_lo, 0x000f000f')
    a('s_mov_b32 exec_hi, 0x000f000f')
    a(f'global_store_short {T[4]}, {R[0]}, s[24:25]')
    if stamps:
        a('s_waitcnt vmcnt(0)')
        stamp()
        a('s_waitcnt lgkmcnt(0)')
        a('s_mov_b64 exec, 1')
        a('s_add_u32 s28, s28, 0x20000000')
        a('s_addc_u32 s29, s29, 0')
        a(f's_mul_i32 {sT0}, s2, {nst[0]*8}')
        a(f'v_mov_b32 {T[0]}, {sT0}')
        for k in range(nst[0]):
            a(f'v_mov_b32 v{WA+2*k}, s{STB+2*k}')
            a(f'v_mov_b32 v{WA+2*k+1}, s{STB+2*k+1}')
            a(f'global_store_dwordx2 {T[0]}, v[{WA+2*k}:{WA+2*k+1}], s[28:29] offset:{8*k}')
    a('L_end:')
    a('s_endpgm')
    a('.section .rodata,"a"')
    a('.p2align 6')
    a(f'.amdhsa_kernel {NAME}_kernel')
    a('.amdhsa_next_free_vgpr 256')
    a('.amdhsa_next_free_sgpr 102')
    a('.amdhsa_accum_offset 256')
    a('.amdhsa_group_segment_fixed_size 0')
    a('.amdhsa_kernarg_size 104')
    a('.amdhsa_user_sgpr_count 2')
    a('.amdhsa_user_sgpr_kernarg_segment_ptr 1')
    a('.amdhsa_system_sgpr_workgroup_id_x 1')
    a('.amdhsa_float_denorm_mode_32 3')
    a('.end_amdhsa_kernel')
    txt = a.finish()
    return HEADER + txt, nst[0], a.npad

if __name__ == '__main__':
    t, n, pad = gen(False)
    open('k.s', 'w').write(t)
    t, n, pad = gen(True)
    open('k_st.s', 'w').write(t)
    print('stamps', n, 'pad', pad)
```

```python
import sys, struct, os, json
from asmlib import Asm
NAME = 'sequential_preLN__sliding_block_cached__dense_activation_gelu__decode'
def f2u(x): return '0x%08x' % struct.unpack('<I', struct.pack('<f', x))[0]
REF = 'cdna_kernels/' + NAME + '.s.ref'
HEADER = open(REF).read().split('; Override launch')[0] if os.path.exists(REF) else ''

def merge(main, extra):
    out = []; n = len(main); m = len(extra); j = 0
    for i, o in enumerate(main):
        out.append(o)
        while j < m and (i + 1) * m >= (j + 1) * n:
            out.append(extra[j]); j += 1
    return out + extra[j:]

def gen(stamps=False, opt=None):
    opt = opt or {}
    a = Asm()
    R = opt.get('R', 20)
    DPPF = 'row_mask:0xf bank_mask:0xf'
    RING = 64; NP = 24
    def rp(p): return RING + 8 * (p % NP)
    AQ, AW1, AW2 = 0, 128, 192
    VK, VV, VWQ, VWO, VW1, VW2, VPUB, VGA, VGB = 'v1', 'v2', 'v3', 'v4', 'v5', 'v6', 'v7', 'v8', 'v9'
    VL, VG, VC, VT = 'v10', 'v11', 'v12', 'v13'
    MA = ['v14', 'v15', 'v16', 'v17']
    MB = ['v18', 'v19', 'v20', 'v21']
    IDX, XR, B1R, B2R, CNT, VLDS, VOUT, E7 = 'v22', 'v23', 'v24', 'v25', 'v26', 'v27', 'v28', 'v29'
    Q = ['v30', 'v31', 'v32', 'v33']
    X0, X1 = 'v34', 'v35'
    ACC = 36
    A0, A1 = 40, 44
    C = ['v48', 'v49', 'v50', 'v51']
    T = [f'v{i}' for i in range(52, 64)]
    acc = f'v[{ACC}:{ACC+3}]'
    sW, sB, sH = 's3', 's30', 's31'
    SK, SV, SWQ, SWO, SW1, SW2, SSL, SB1 = 32, 36, 40, 44, 48, 52, 56, 60
    def srd(n): return f's[{n}:{n+3}]'
    sO, sQb, sT0, sT1, sT2, sT3 = 's64', 's65', 's66', 's67', 's68', 's69'
    sSLOT, sPEND, sIT, sW1b, sW2b, sOb = 's70', 's71', 's72', 's73', 's74', 's75'
    sMB0, sMB1 = 's[76:77]', 's[78:79]'
    STB = 80
    nst = [0]; stnames = []
    def stamp(name):
        if stamps and name in stamps:
            stnames.append(name)
            a(f's_memrealtime s[{STB+2*nst[0]}:{STB+2*nst[0]+1}]'); nst[0] += 1
        if stamps and (name + '_c') in stamps:
            stnames.append(name + '_c')
            a(f's_memtime s[{STB+2*nst[0]}:{STB+2*nst[0]+1}]'); nst[0] += 1
    L_QP, L_OP, L_SM, L_ST, L_ZP, L_H = 0, 2048, 4096, 4160, 4352, 6400
    LDS = 8448

    def wave_reduce(op, xs, sd):
        for n in (8, 4, 2, 1):
            for x in xs: a(f'{op}_dpp {x}, {x}, {x} row_ror:{n} {DPPF}')
        for x in xs: a(f'{op}_dpp {x}, {x}, {x} row_bcast:15 row_mask:0xa bank_mask:0xf')
        for x in xs: a(f'{op}_dpp {x}, {x}, {x} row_bcast:31 row_mask:0xc bank_mask:0xf')
        for x, s in zip(xs, sd): a(f'v_readlane_b32 {s}, {x}, 63')
    def bf16r(dst, src):
        a(f'v_cvt_pk_bf16_f32 {dst}, {src}, {src}')
        a(f'v_and_b32 {dst}, 0xffff0000, {dst}')
    def bf16r2(d0, d1, s0, s1):
        a(f'v_cvt_pk_bf16_f32 {d1}, {s0}, {s1}')
        a(f'v_lshlrev_b32 {d0}, 16, {d1}')
        a(f'v_and_b32 {d1}, 0xffff0000, {d1}')
    def ln_finish(mean, var, x0, x1, dst, t0, t1):
        bf16r2(mean, var, mean, var)
        a(f'v_add_f32 {var}, {f2u(1e-5)}, {var}')
        a(f'v_sub_f32 {t0}, {x0}, {mean}')
        bf16r(var, var)
        a(f'v_sqrt_f32 {var}, {var}')
        a(f'v_sub_f32 {t1}, {x1}, {mean}')
        bf16r(var, var)
        a(f'v_rcp_f32 {var}, {var}')
        bf16r2(t0, t1, t0, t1)
        a(f'v_mul_f32 {t0}, {t0}, {var}')
        a(f'v_mul_f32 {t1}, {t1}, {var}')
        a(f'v_cvt_pk_bf16_f32 {dst}, {t0}, {t1}')
    kk = [0]
    def build4(src, lane):
        A = A0 if kk[0] % 2 == 0 else A1; kk[0] += 1
        for r in range(4):
            a(f'v_and_b32_dpp v{A+r}, {src}, {MA[r]} row_newbcast:{lane} {DPPF}')
        return A
    def build8(src, lane):
        A = A0 if kk[0] % 2 == 0 else A1
        x = T[10 + kk[0] % 2]; kk[0] += 1
        a(f'v_mov_b32_dpp {x}, {src} row_newbcast:{lane} row_mask:0xf bank_mask:0x3')
        a(f'v_mov_b32_dpp {x}, {src} row_newbcast:{lane+8} row_mask:0xf bank_mask:0xc')
        for r in range(4):
            a(f'v_and_b32 v{A+r}, {x}, {MB[r]}')
        return A
    def smf(A, B):
        a(f'v_smfmac_f32_16x16x64_bf16 {acc}, v[{A}:{A+3}], {B}, {IDX}')
    def zero_acc():
        for r in range(4): a(f'v_mov_b32 v{ACC+r}, 0')
    def gemv(build, src, Bs):
        n = len(Bs)
        A = build(src, 0)
        for k in range(n):
            An = build(src, k + 1) if k + 1 < n else None
            smf(A, Bs[k]); A = An
    def rs4(Rr):
        a(f'v_permlane32_swap_b32 {Rr[0]}, {Rr[2]}')
        a(f'v_permlane32_swap_b32 {Rr[1]}, {Rr[3]}')
        a(f'v_add_f32 {Rr[0]}, {Rr[0]}, {Rr[2]}')
        a(f'v_add_f32 {Rr[1]}, {Rr[1]}, {Rr[3]}')
        a(f'v_permlane16_swap_b32 {Rr[0]}, {Rr[1]}')
        a(f'v_add_f32 {Rr[0]}, {Rr[0]}, {Rr[1]}')
    def publish(off):
        a('s_mov_b32 exec_hi, 0')
        for r in range(4): a(f'v_min_u32 {T[r]}, -2, v{ACC+r}')
        a(f'buffer_store_dwordx4 v[{T[0][1:]}:{T[3][1:]}], {VPUB}, {srd(SSL)}, {sSLOT} offen offset:{off} sc1')
        a('s_mov_b32 exec_hi, -1')

    a(f'; @launch grid=(256,1,1) block=(256,1,1) lds={LDS}')
    a('.amdgcn_target "amdgcn-amd-amdhsa--gfx950"')
    a('.text')
    a(f'.globl {NAME}_kernel')
    a('.p2align 8')
    a(f'.type {NAME}_kernel,@function')
    a(f'{NAME}_kernel:')
    a('s_cmp_ge_u32 s2, 256')
    a('s_cbranch_scc1 L_end')
    a('s_load_dwordx8 s[4:11], s[0:1], 0')
    a('s_load_dwordx8 s[12:19], s[0:1], 32')
    a('s_load_dwordx8 s[20:27], s[0:1], 64')
    a('s_load_dwordx2 s[28:29], s[0:1], 96')
    stamp('start')
    a(f'v_lshrrev_b32 {VT}, 6, v0')
    a(f'v_and_b32 {VL}, 63, v0')
    a(f'v_readfirstlane_b32 {sW}, {VT}')
    a(f'v_lshrrev_b32 {VG}, 4, {VL}')
    a(f'v_and_b32 {VC}, 15, v0')
    a(f's_lshr_b32 {sB}, s2, 5')
    a(f's_and_b32 {sH}, s2, 31')
    a(f'v_lshlrev_b32 {VK}, 11, {VT}')
    a(f'v_lshl_add_u32 {VV}, {VL}, 4, {VK}')
    a(f'v_lshl_add_u32 {VK}, {VG}, 9, {VK}')
    a(f'v_lshl_add_u32 {VK}, {VC}, 4, {VK}')
    GH, GL = T[0], T[1]
    a(f'v_lshrrev_b32 {GH}, 1, {VG}')
    a(f'v_and_b32 {GL}, 1, {VG}')
    a(f'v_lshl_add_u32 {VWQ}, {GH}, 6, {GL}')
    a(f'v_lshlrev_b32 {VWQ}, 13, {VWQ}')
    a(f'v_lshl_add_u32 {VWQ}, {VC}, 4, {VWQ}')
    a(f's_lshl_b32 {sT0}, {sB}, 10')
    a(f'v_lshl_add_u32 {T[2]}, {VL}, 4, {sT0}')
    a(f'v_and_b32 {T[3]}, 31, v0')
    a(f'v_lshlrev_b32 {T[3]}, 2, {T[3]}')
    a(f'v_lshl_add_u32 {T[3]}, {VT}, 7, {T[3]}')
    a(f'v_lshlrev_b32 {VGA}, 2, {T[3]}')
    a(f'v_lshl_add_u32 {T[3]}, {GH}, 1, {T[3]}')
    a(f'v_lshl_add_u32 {CNT}, {T[3]}, 1, {sT0}')
    a(f'v_lshlrev_b32 {VOUT}, 2, {T[3]}')
    a(f'v_lshlrev_b32 {VPUB}, 4, v0')
    for r in range(4): a(f'v_mov_b32 v{A0+r}, -1')
    a(f's_lshl_b32 {sT1}, s2, 20')
    a(f's_add_u32 {sT1}, {sT1}, 0xC0000')
    a(f's_lshl_b32 {sSLOT}, {sH}, 12')
    a(f's_lshl_b32 {sT2}, {sB}, 17')
    a(f's_lshl_b32 {sQb}, {sW}, 20')
    a(f's_lshl_b32 {sT3}, {sH}, 8')
    a(f's_add_u32 {sQb}, {sQb}, {sT3}')
    for n, sz in ((SK, 0x40000), (SV, 0x40000), (SWQ, 0x400000), (SWO, 0x400000), (SW1, 512 * 2752), (SW2, 1376 * 1024), (SSL, 0x20000), (SB1, 2752)):
        a(f's_mov_b32 s{n+2}, {sz:#x}')
        a(f's_mov_b32 s{n+3}, 0x20000')
    a('s_waitcnt lgkmcnt(0)')
    a(f's_add_u32 s{SK}, s6, {sT1}')
    a(f's_addc_u32 s{SK+1}, s7, 0')
    a(f's_mov_b32 s{SWQ}, s10')
    a(f's_mov_b32 s{SWQ+1}, s11')

    vm = []
    def issue(tag, text): a(text); vm.append(tag)
    def waitfor(tag):
        if tag not in vm: return
        i = vm.index(tag)
        a(f's_waitcnt vmcnt({len(vm) - 1 - i})')
        del vm[:i + 1]
    def arrived(tag): return tag in issued and tag not in vm
    issued = set()
    ringuse = {}
    ringn = [0]
    slot_of = {}
    def issue_pair(op):
        t, u = op
        if t in 'KV':
            p = ringn[0]; ringn[0] += 1
            assert ringuse.get(p % NP) is None, f'ring slot busy at {op}: {ringuse[p % NP]}'
            ringuse[p % NP] = op; slot_of[op] = rp(p)
            b = rp(p)
            a(f's_mov_b32 {sO}, {u*8192}')
            if t == 'K':
                issue((t, u, 0), f'buffer_load_dwordx4 v[{b}:{b+3}], {VK}, {srd(SK)}, {sO} offen nt')
                issue((t, u, 1), f'buffer_load_dwordx4 v[{b+4}:{b+7}], {VK}, {srd(SK)}, {sO} offen offset:256 nt')
            else:
                issue((t, u, 0), f'buffer_load_dwordx4 v[{b}:{b+3}], {VV}, {srd(SV)}, {sO} offen nt')
                issue((t, u, 1), f'buffer_load_dwordx4 v[{b+4}:{b+7}], {VV}, {srd(SV)}, {sO} offen offset:1024 nt')
        elif t == 'G':
            b = GA + 8 * u
            a(f's_mov_b32 {sO}, {u*4096}')
            issue((t, u, 0), f'buffer_load_dwordx4 v[{b}:{b+3}], {VGA}, {srd(SSL)}, {sO} offen sc1')
            a(f's_mov_b32 {sO}, {u*4096+65536}')
            issue((t, u, 1), f'buffer_load_dwordx4 v[{b+4}:{b+7}], {VGA}, {srd(SSL)}, {sO} offen sc1')
        else:
            base, vo, sr, sb, offs = {
                'Q': (AQ, VWQ, SWQ, sQb, [(2 * u + L) * 16384 for L in (0, 1)]),
                'O': (AQ, VWO, SWO, sOb, [(64 * L + 2 * u) * 1024 for L in (0, 1)]),
                'F': (AW1, VW1, SW1, sW1b, [(2 * u + L) * 5504 for L in (0, 1)]),
                'S': (AW2, VW2, SW2, sW2b, [(2 * u + L) * 2048 for L in (0, 1)]),
            }[t]
            for L in (0, 1):
                b = base + 8 * u + 4 * L
                a(f's_add_u32 {sO}, {sb}, {offs[L]}')
                issue((t, u, L), f'buffer_load_dwordx4 a[{b}:{b+3}], {vo}, {srd(sr)}, {sO} offen nt')
        issued.add((t, u, 0)); issued.add((t, u, 1))
    def free_slot(op):
        for k, v in ringuse.items():
            if v == op: ringuse[k] = None

    K = [('K', u) for u in range(32)]; V = [('V', u) for u in range(32)]
    Qo = [('Q', u) for u in range(16)]; Oo = [('O', u) for u in range(16)]
    Fo = [('F', u) for u in range(8)]; So = [('S', u) for u in range(6)]
    nq = opt.get('nq', 14)
    nf = opt.get('nf', 8)
    order = merge(Qo, K[:nq]) if nq < 16 else merge(K[:nq], Qo)
    order.remove(K[0]); order.insert(0, K[0])
    if opt.get('even', 1):
        rest = K[nq:] + V
        no = len(rest) - opt.get('tailv', 2)
        ex = Fo + So + Oo if opt.get('even', 1) == 1 else Fo[:4] + Oo + Fo[4:] + So
        order += merge(rest[:no], ex) + rest[no:]
    else:
        order += merge(Fo + So, K[nq:nq + nf])
        rest = K[nq + nf:] + V
        no = opt.get('no', len(rest) - 6)
        order += merge(rest[:no], Oo) + rest[no:]
    RP = R // 2

    XB = T[4]
    issue('X8', f'global_load_dwordx4 v[{T[4][1:]}:{T[7][1:]}], {T[2]}, s[4:5]')
    issue('XR', f'global_load_dword {XR}, {CNT}, s[4:5]')
    pos = 0
    issue_pair(order[0]); pos = 1
    a(f's_add_u32 s{SSL}, s28, {sT2}')
    a(f's_addc_u32 s{SSL+1}, s29, 0')
    issue('MK', f'buffer_store_dwordx4 v[{A0}:{A0+3}], {VPUB}, {srd(SSL)}, {sSLOT} offen sc1')
    while pos < RP: issue_pair(order[pos]); pos += 1
    stamp('issued')
    a(f's_add_u32 s{SV}, s8, {sT1}')
    a(f's_addc_u32 s{SV+1}, s9, 0')
    for n, p in ((SWO, 12), (SW1, 16), (SW2, 20), (SB1, 18)):
        a(f's_mov_b32 s{n}, s{p}')
        a(f's_mov_b32 s{n+1}, s{p+1}')
    a('s_mov_b32 s76, 0xaaaaaaaa'); a('s_mov_b32 s77, 0xaaaaaaaa')
    a('s_mov_b32 s78, 0xcccccccc'); a('s_mov_b32 s79, 0xcccccccc')
    a(f's_lshl_b32 {sOb}, {sH}, 17')
    a(f's_mul_i32 {sW1b}, {sH}, 96')
    a(f's_mul_i32 {sW2b}, {sH}, {48*1024}')
    HALF = T[2]
    a(f'v_and_b32 {E7}, 7, v0')
    a(f'v_bfe_u32 {HALF}, v0, 3, 1')
    a(f'v_and_b32 {IDX}, 3, v0')
    a(f'v_mul_u32_u24 {IDX}, 0x5555, {IDX}')
    a(f'v_mov_b32 {T[8]}, 0xffff')
    a(f'v_mov_b32 {T[9]}, 0xffff0000')
    a(f'v_lshrrev_b32 {T[3]}, 2, {VC}')
    a(f'v_cmp_eq_u32 vcc, 0, {T[3]}')
    a(f'v_cndmask_b32 {MA[0]}, 0, {T[8]}, vcc'); a(f'v_cndmask_b32 {MA[2]}, 0, {T[9]}, vcc')
    a(f'v_cmp_eq_u32 vcc, 1, {T[3]}')
    a(f'v_cndmask_b32 {MA[1]}, 0, {T[8]}, vcc'); a(f'v_cndmask_b32 {MA[3]}, 0, {T[9]}, vcc')
    a(f'v_cmp_gt_u32 vcc, 4, {E7}')
    a(f'v_cndmask_b32 {MB[0]}, 0, {T[8]}, vcc'); a(f'v_cndmask_b32 {MB[2]}, 0, {T[9]}, vcc')
    a(f'v_xor_b32 {MB[1]}, {T[8]}, {MB[0]}'); a(f'v_xor_b32 {MB[3]}, {T[9]}, {MB[2]}')
    a(f'v_lshlrev_b32 {T[3]}, 8, {VT}')
    a(f'v_lshl_add_u32 {T[3]}, {VC}, 4, {T[3]}')
    a(f'v_lshl_add_u32 {VWO}, {GH}, 5, {GL}')
    a(f'v_lshl_add_u32 {VWO}, {VWO}, 10, {T[3]}')
    a(f'v_mul_u32_u24 {VW2}, 24, {GL}')
    a(f'v_add_u32 {VW2}, {VW2}, {GH}')
    a(f'v_lshl_add_u32 {VW2}, {VW2}, 10, {T[3]}')
    a(f'v_lshl_add_u32 {VW1}, {GH}, 6, {GL}')
    a(f'v_lshl_add_u32 {VW1}, {HALF}, 5, {VW1}')
    a(f'v_lshl_add_u32 {VW1}, {VT}, 7, {VW1}')
    a(f'v_mul_u32_u24 {VW1}, 2752, {VW1}')
    a(f'v_lshl_add_u32 {VW1}, {E7}, 4, {VW1}')
    a(f's_mul_i32 {sT0}, {sH}, 6')
    a(f's_sub_i32 {sT0}, 172, {sT0}')
    a(f's_min_i32 {sT0}, {sT0}, 6')
    a(f'v_cmp_gt_i32 vcc, {sT0}, {E7}')
    a(f'v_mov_b32 {T[3]}, 0x7fff0000')
    a(f'v_cndmask_b32 {VW1}, {T[3]}, {VW1}, vcc')
    a(f'v_lshl_add_u32 {VGA}, {GH}, 15, {VGA}')
    a(f'v_lshrrev_b32 {VGB}, 2, {VL}')
    a(f'v_lshlrev_b32 {VGB}, 12, {VGB}')
    a(f'v_and_b32 {T[3]}, 3, v0')
    a(f'v_lshl_add_u32 {VGB}, {T[3]}, 4, {VGB}')
    a(f'v_lshlrev_b32 {VLDS}, 9, {VT}')
    a(f'v_lshl_add_u32 {VLDS}, {VC}, 5, {VLDS}')
    a(f'v_lshl_add_u32 {VLDS}, {VG}, 4, {VLDS}')
    zero_acc()
    waitfor('XR')
    X = [C[0], C[1], C[2], C[3], T[8], T[9], T[10], T[11]]
    for k in range(4):
        a(f'v_lshlrev_b32 {X[2*k]}, 16, {T[4+k]}')
        a(f'v_and_b32 {X[2*k+1]}, 0xffff0000, {T[4+k]}')
    a(f'v_lshlrev_b32 {X0}, 16, {XR}')
    a(f'v_and_b32 {X1}, 0xffff0000, {XR}')
    a(f'v_add_f32 {T[4]}, {X[0]}, {X[1]}'); a(f'v_add_f32 {T[5]}, {X[2]}, {X[3]}')
    a(f'v_add_f32 {T[6]}, {X[4]}, {X[5]}'); a(f'v_add_f32 {T[7]}, {X[6]}, {X[7]}')
    a(f'v_add_f32 {T[4]}, {T[4]}, {T[5]}'); a(f'v_add_f32 {T[6]}, {T[6]}, {T[7]}')
    a(f'v_add_f32 {T[4]}, {T[4]}, {T[6]}')
    wave_reduce('v_add_f32', [T[4]], [sT0])
    a(f'v_mov_b32 {T[5]}, {f2u(1.0/512)}')
    a(f'v_mul_f32 {T[5]}, {sT0}, {T[5]}')
    for k in range(8): a(f'v_sub_f32 {X[k]}, {X[k]}, {T[5]}')
    a(f'v_mul_f32 {T[4]}, {X[0]}, {X[0]}')
    for k in range(1, 8): a(f'v_fmac_f32 {T[4]}, {X[k]}, {X[k]}')
    wave_reduce('v_add_f32', [T[4]], [sT0])
    a(f'v_mov_b32 {T[6]}, {f2u(1.0/512)}')
    a(f'v_mul_f32 {T[6]}, {sT0}, {T[6]}')
    XN = XR
    ln_finish(T[5], T[6], X0, X1, XN, T[8], T[9])
    waitfor('MK')

    state = dict(q=0, k=0, v=0, qready=False, pready=False)
    U = [[T[0], T[1], T[2], T[3]], [T[4], T[5], T[6], T[7]]]
    TMP = [[T[8], T[9]], [T[10], T[11]]]
    lane_of = {}
    def do_q(u):
        A = build4(XN, u)
        smf(A, f'a[{AQ+8*u}:{AQ+8*u+7}]')
    def q_finish():
        a('s_mov_b32 exec_hi, 0')
        a(f'ds_write_b128 {VLDS}, {acc} offset:{L_QP}')
        a('s_mov_b32 exec_hi, -1')
        a(f'v_lshlrev_b32 {CNT}, 5, {VC}')
        a(f'v_mov_b32 {VPUB}, {VLDS}')
        a('s_waitcnt lgkmcnt(0)')
        a('s_barrier')
        stamp('qbar')
        a(f's_cmp_lg_u32 {sW}, 0')
        a('s_cbranch_scc1 L_nosig')
        a(f's_lshl_b32 {sT0}, {sB}, 5')
        a(f'v_mov_b32 {T[0]}, {sT0}')
        a(f'v_mov_b32 {T[1]}, 1')
        a('s_mov_b64 exec, 1')
        a(f'global_atomic_add {T[0]}, {T[1]}, s[26:27] sc1')
        a('s_mov_b64 exec, -1')
        a('L_nosig:')
        B0 = 40
        for half in range(2):
            for p in range(4):
                d = B0 + 4 * p if p < 3 else int(T[4][1:])
                a(f'ds_read_b128 v[{d}:{d+3}], {CNT} offset:{L_QP + p*512 + half*16}')
            a('s_waitcnt lgkmcnt(0)')
            d3 = int(T[4][1:])
            for e in range(4):
                a(f'v_add_f32 v{B0+e}, v{B0+e}, v{B0+4+e}')
                a(f'v_add_f32 v{B0+8+e}, v{B0+8+e}, v{d3+e}')
            for e in range(4): a(f'v_add_f32 v{B0+e}, v{B0+e}, v{B0+8+e}')
            a(f'v_cvt_pk_bf16_f32 {Q[2*half]}, v{B0}, v{B0+1}')
            a(f'v_cvt_pk_bf16_f32 {Q[2*half+1]}, v{B0+2}, v{B0+3}')
        zero_acc()
    def do_k(u):
        b = slot_of[('K', u)]
        i = u % 16
        S = []
        for ch in range(2):
            S.append([U[ch][i // 4], TMP[ch][0], TMP[ch][1], TMP[ch][0]][i % 4])
        for r in range(4):
            for ch in range(2):
                a(f'v_dot2_f32_bf16 {S[ch]}, v{b+4*ch+r}, {Q[r]}, {"0" if r == 0 else S[ch]}')
        free_slot(('K', u))
        if i % 2 == 1:
            for ch in range(2):
                sa = U[ch][i // 4] if i % 4 == 1 else TMP[ch][1]
                a(f'v_add_f32_dpp {sa}, {sa}, {sa} row_ror:8 row_mask:0xf bank_mask:0x3')
            for ch in range(2):
                sa = U[ch][i // 4] if i % 4 == 1 else TMP[ch][1]
                sb = TMP[ch][0]
                a(f'v_add_f32_dpp {sa}, {sb}, {sb} row_ror:8 row_mask:0xf bank_mask:0xc')
        if i % 4 == 3:
            for ch in range(2):
                ta = U[ch][i // 4]
                a(f'v_add_f32_dpp {ta}, {ta}, {ta} row_half_mirror row_mask:0xf bank_mask:0x5')
            for ch in range(2):
                ta, tb = U[ch][i // 4], TMP[ch][1]
                a(f'v_add_f32_dpp {ta}, {tb}, {tb} row_half_mirror row_mask:0xf bank_mask:0xa')
        lane_of[u] = ((i & 1) << 3) | (((i >> 1) & 1) << 2) | ((i >> 2) & 1) | (((i >> 3) & 1) << 1)
        if i == 15:
            for ch in range(2):
                for x in U[ch]: a(f'v_add_f32_dpp {x}, {x}, {x} quad_perm:[1,0,3,2] {DPPF}')
            for ch in range(2):
                a(f'v_cndmask_b32 {U[ch][0]}, {U[ch][0]}, {U[ch][1]}, {sMB0}')
                a(f'v_cndmask_b32 {U[ch][2]}, {U[ch][2]}, {U[ch][3]}, {sMB0}')
            for ch in range(2):
                for x in (U[ch][0], U[ch][2]): a(f'v_add_f32_dpp {x}, {x}, {x} quad_perm:[2,3,0,1] {DPPF}')
            for ch in range(2):
                a(f'v_cndmask_b32 {C[2*(u//16)+ch]}, {U[ch][0]}, {U[ch][2]}, {sMB1}')
    LOG2E = 1.4426950408889634
    def softmax():
        stamp('qkdone')
        for k in (0, 2):
            bf16r2(C[k], C[k+1], C[k], C[k+1])
        for k in range(4): a(f'v_mul_f32 {C[k]}, {f2u(128 ** -0.5)}, {C[k]}')
        for k in (0, 2):
            bf16r2(C[k], C[k+1], C[k], C[k+1])
        a(f'v_max_f32 {T[0]}, {C[0]}, {C[1]}')
        a(f'v_max3_f32 {T[0]}, {T[0]}, {C[2]}, {C[3]}')
        wave_reduce('v_max_f32', [T[0]], [sT0])
        for k in range(4): a(f'v_subrev_f32 {T[k]}, {sT0}, {C[k]}')
        for k in range(4): a(f'v_mul_f32 {T[k]}, {f2u(LOG2E)}, {T[k]}')
        for k in range(4): a(f'v_exp_f32 {T[k]}, {T[k]}')
        a(f'v_add_f32 {T[0]}, {T[0]}, {T[1]}')
        a(f'v_add_f32 {T[2]}, {T[2]}, {T[3]}')
        a(f'v_add_f32 {T[0]}, {T[0]}, {T[2]}')
        wave_reduce('v_add_f32', [T[0]], [sT1])
        a(f'v_mov_b32 {T[0]}, {sT0}')
        a(f'v_mov_b32 {T[1]}, {sT1}')
        a(f'v_lshlrev_b32 {T[2]}, 3, {VT}')
        a(f'ds_write_b64 {T[2]}, v[{T[0][1:]}:{T[1][1:]}] offset:{L_SM}')
        a(f'v_and_b32 {T[2]}, 3, v0')
        a(f'v_lshlrev_b32 {T[2]}, 3, {T[2]}')
        a('s_waitcnt lgkmcnt(0)')
        a('s_barrier')
        a(f'ds_read_b64 v[{T[0][1:]}:{T[1][1:]}], {T[2]} offset:{L_SM}')
        a('s_waitcnt lgkmcnt(0)')
        a(f'v_max_f32_dpp {T[2]}, {T[0]}, {T[0]} quad_perm:[1,0,3,2] {DPPF}')
        a(f'v_max_f32_dpp {T[2]}, {T[2]}, {T[2]} quad_perm:[2,3,0,1] {DPPF}')
        a(f'v_sub_f32 {T[0]}, {T[0]}, {T[2]}')
        for k in range(4): a(f'v_sub_f32 {C[k]}, {C[k]}, {T[2]}')
        a(f'v_mul_f32 {T[0]}, {f2u(LOG2E)}, {T[0]}')
        for k in range(4): a(f'v_mul_f32 {C[k]}, {f2u(LOG2E)}, {C[k]}')
        a(f'v_exp_f32 {T[0]}, {T[0]}')
        for k in range(4): a(f'v_exp_f32 {C[k]}, {C[k]}')
        a(f'v_mul_f32 {T[1]}, {T[1]}, {T[0]}')
        a(f'v_add_f32_dpp {T[1]}, {T[1]}, {T[1]} quad_perm:[1,0,3,2] {DPPF}')
        a(f'v_add_f32_dpp {T[1]}, {T[1]}, {T[1]} quad_perm:[2,3,0,1] {DPPF}')
        a(f'v_rcp_f32 {T[1]}, {T[1]}')
        for k in range(4): a(f'v_mul_f32 {C[k]}, {C[k]}, {T[1]}')
        a(f'v_cvt_pk_bf16_f32 {C[0]}, {C[0]}, {C[1]}')
        a(f'v_cvt_pk_bf16_f32 {C[1]}, {C[2]}, {C[3]}')
        stamp('smdone')
        a(f's_lshl_b32 {sT0}, {sB}, 5')
        a(f'v_mov_b32 {T[0]}, {sT0}')
        issue('CNT', f'global_load_dword {CNT}, {T[0]}, s[26:27] sc1')
        a(f'v_lshl_add_u32 {T[1]}, {VC}, 2, {VG}')
        a(f's_mul_i32 {sT0}, {sH}, 48')
        a(f'v_add_lshl_u32 {T[2]}, {T[1]}, {sT0}, 1')
        issue('B1', f'buffer_load_ushort {B1R}, {T[2]}, {srd(SB1)}, 0 offen')
        a(f'v_and_b32 {T[1]}, 15, {T[1]}')
        a(f's_lshl_b32 {sT0}, {sH}, 4')
        a(f'v_add_lshl_u32 {C[2]}, {T[1]}, {sT0}, 1')
        issue('B2', f'global_load_ushort {B2R}, {C[2]}, s[22:23]')
        issued.update(['CNT', 'B1', 'B2'])
    def do_v(u, wait=False):
        b = slot_of[('V', u)]
        A = build4(C[u // 16], lane_of[u])
        if wait: waitfor(('V', u, 1))
        smf(A, f'v[{b}:{b+7}]')
        free_slot(('V', u))
    def cnt_check():
        a(f'v_readfirstlane_b32 {sT0}, {CNT}')
        a(f's_cmp_ge_u32 {sT0}, 32')
        a('s_cbranch_scc1 L_cntok')
        a(f's_mov_b32 {sIT}, 0')
        a(f's_lshl_b32 {sT0}, {sB}, 5')
        a(f'v_mov_b32 {T[0]}, {sT0}')
        a('L_cntspin:')
        a(f'global_load_dword {CNT}, {T[0]}, s[26:27] sc1')
        a('s_waitcnt vmcnt(0)')
        a(f'v_readfirstlane_b32 {sT0}, {CNT}')
        a(f's_add_u32 {sIT}, {sIT}, 1')
        a(f's_cmp_gt_u32 {sIT}, 0x40000')
        a('s_cbranch_scc1 L_cntok')
        a('s_sleep 4')
        a(f's_cmp_lt_u32 {sT0}, 32')
        a('s_cbranch_scc1 L_cntspin')
        a('L_cntok:')
    burst = opt.get('burst', 3)
    cnt_done = [False]
    def consume():
        while state['q'] < 16 and arrived(('Q', state['q'], 1)):
            do_q(state['q']); state['q'] += 1
            if state['q'] == 16: q_finish(); state['qready'] = True; return
        n = 0
        while state['qready'] and state['k'] < 32 and arrived(('K', state['k'], 1)) and n < burst:
            do_k(state['k']); state['k'] += 1; n += 1
            if state['k'] == 32: softmax(); state['pready'] = True; return
        while state['pready'] and state['v'] < 32 and arrived(('V', state['v'], 1)) and n < burst:
            do_v(state['v']); state['v'] += 1; n += 1
        if not cnt_done[0] and arrived('CNT'): cnt_check(); cnt_done[0] = True
    while pos < len(order):
        t, u = order[pos - RP]
        waitfor((t, u, 1))
        if order[pos][0] == 'O': assert state['q'] == 16 or arrived(('Q', 15, 1)) or state['q'] > order[pos][1], 'O before Q consumed'
        op = order[pos]
        need_first = (op[0] in 'KV' and ringuse.get(ringn[0] % NP) is not None) or (op[0] == 'O' and state['q'] <= op[1])
        if need_first: consume()
        issue_pair(op); pos += 1
        if not need_first: consume()
    assert state['pready'] and cnt_done[0], state
    stamp('allissued')
    GAp = ringn[0] % NP
    early = opt.get('early', 1)
    free = [p for p in range(NP) if ringuse.get(p) is None]
    GA = None
    for s0 in range(NP - 7):
        if all(p in free for p in range(s0, s0 + 8)): GA = RING + 8 * s0; break
    assert GA is not None, (free, state)
    gq = [('G', u) for u in range(8)] if early else []
    while state['v'] < 32:
        do_v(state['v'], wait=True); state['v'] += 1
        if gq and state['v'] >= 32 - opt.get('gstart', 4):
            for _ in range(opt.get('gper', 2)):
                if gq: issue_pair(gq.pop(0))
    stamp('pvdone')
    a(f'v_lshlrev_b32 {T[8]}, 3, {VL}')
    a('s_mov_b32 exec_hi, 0')
    a(f'ds_write_b128 {VLDS}, {acc} offset:{L_OP}')
    a('s_mov_b32 exec_hi, -1')
    while gq: issue_pair(gq.pop(0))
    a('s_waitcnt lgkmcnt(0)')
    a('s_barrier')
    stamp('obar')
    for p in range(4):
        a(f'ds_read_b64 v[{T[2*p][1:]}:{T[2*p+1][1:]}], {T[8]} offset:{L_OP + p*512}')
    zero_acc()
    waitfor(('O', 15, 1))
    a('s_waitcnt lgkmcnt(0)')
    for e in range(2):
        a(f'v_add_f32 {T[e]}, {T[e]}, {T[2+e]}')
        a(f'v_add_f32 {T[4+e]}, {T[4+e]}, {T[6+e]}')
    for e in range(2): a(f'v_add_f32 {T[e]}, {T[e]}, {T[4+e]}')
    PK = T[8]
    a(f'v_cvt_pk_bf16_f32 {PK}, {T[0]}, {T[1]}')
    gemv(build4, PK, [f'a[{AQ+8*u}:{AQ+8*u+7}]' for u in range(16)])
    publish(0)
    stamp('pubA')
    if opt.get('stopA'): a('s_branch L_fin')
    a(f's_mov_b32 {sPEND}, 0xff')
    a(f's_mov_b32 {sIT}, 0')
    zero_acc()
    if early:
        a('s_waitcnt vmcnt(1)')
        a('s_branch L_pa_check')
    a('L_pollA:')
    def tree(tag, body):
        for hi in range(2):
            a(f's_and_b32 {sT1}, {sPEND}, {0xf << (4*hi)}')
            a(f's_cbranch_scc0 L_{tag}_h{hi}')
            for u in range(4 * hi, 4 * hi + 4):
                a(f's_bitcmp1_b32 {sPEND}, {u}')
                a(f's_cbranch_scc0 L_{tag}{u}')
                body(u)
                a(f'L_{tag}{u}:')
            a(f'L_{tag}_h{hi}:')
    def ld(u):
        b = GA + 8 * u
        a(f's_mov_b32 {sO}, {u*4096}')
        a(f'buffer_load_dwordx4 v[{b}:{b+3}], {VGA}, {srd(SSL)}, {sO} offen sc1')
        a(f's_mov_b32 {sO}, {u*4096+65536}')
        a(f'buffer_load_dwordx4 v[{b+4}:{b+7}], {VGA}, {srd(SSL)}, {sO} offen sc1')
    tree('pal', ld)
    a('s_waitcnt vmcnt(0)')
    a('L_pa_check:')
    def chk(u):
        b = GA + 8 * u
        a(f'v_max3_u32 {T[4]}, v{b}, v{b+1}, v{b+2}')
        a(f'v_max3_u32 {T[5]}, v{b+3}, v{b+4}, v{b+5}')
        a(f'v_max3_u32 {T[4]}, {T[4]}, v{b+6}, v{b+7}')
        a(f'v_max_u32 {T[4]}, {T[4]}, {T[5]}')
        a(f'v_cmp_eq_u32 vcc, -1, {T[4]}')
        a(f's_cbranch_vccnz L_pac{u}')
        a(f's_bitset0_b32 {sPEND}, {u}')
        a(f'v_pk_add_f32 v[{b}:{b+1}], v[{b}:{b+1}], v[{b+4}:{b+5}]')
        a(f'v_pk_add_f32 v[{b+2}:{b+3}], v[{b+2}:{b+3}], v[{b+6}:{b+7}]')
    tree('pac', chk)
    a(f's_cmp_eq_u32 {sPEND}, 0')
    a('s_cbranch_scc1 L_pollA_done')
    a(f's_add_u32 {sIT}, {sIT}, 1')
    a(f's_cmp_gt_u32 {sIT}, 0x40000')
    a('s_cbranch_scc1 L_pollA_done')
    if opt.get('sleepA', 1): a(f's_sleep {opt.get("sleepA", 1)}')
    a('s_branch L_pollA')
    a('L_pollA_done:')
    vm.clear()
    stamp('pollA')
    for step in (4, 2, 1):
        for p in range(step):
            for e in (0, 2):
                x = GA + 8 * p + e; y = GA + 8 * (p + step) + e
                a(f'v_pk_add_f32 v[{x}:{x+1}], v[{x}:{x+1}], v[{y}:{y+1}]')
    Rr = [f'v{GA+e}' for e in range(4)]
    a(f'v_permlane32_swap_b32 {Rr[0]}, {Rr[2]}')
    a(f'v_permlane32_swap_b32 {Rr[1]}, {Rr[3]}')
    a(f'v_add_f32 {Rr[0]}, {Rr[0]}, {Rr[2]}')
    a(f'v_add_f32 {Rr[1]}, {Rr[1]}, {Rr[3]}')
    H0, H1 = T[0], T[1]
    bf16r2(H0, H1, Rr[0], Rr[1])
    a(f'v_add_f32 {H0}, {X0}, {H0}')
    a(f'v_add_f32 {H1}, {X1}, {H1}')
    bf16r2(H0, H1, H0, H1)
    a(f'v_readfirstlane_b32 {sT2}, {H0}')
    a(f'ds_write_b64 {VOUT}, v[{H0[1:]}:{H1[1:]}] offset:{L_H}')
    a(f'v_subrev_f32 {T[2]}, {sT2}, {H0}')
    a(f'v_subrev_f32 {T[3]}, {sT2}, {H1}')
    a(f'v_mul_f32 {T[4]}, {T[2]}, {T[2]}')
    a(f'v_add_f32 {T[2]}, {T[2]}, {T[3]}')
    a(f'v_fmac_f32 {T[4]}, {T[3]}, {T[3]}')
    wave_reduce('v_add_f32', [T[2], T[4]], [sT0, sT1])
    a(f'v_mov_b32 {T[2]}, {f2u(1.0/128)}')
    a(f'v_lshlrev_b32 {T[4]}, 3, {VT}')
    a(f'v_mul_f32 {T[2]}, {sT0}, {T[2]}')
    a(f'v_mov_b32 {T[3]}, {sT1}')
    a(f'v_fma_f32 {T[3]}, -{T[2]}, {sT0}, {T[3]}')
    a(f'v_add_f32 {T[2]}, {sT2}, {T[2]}')
    a(f'ds_write_b64 {T[4]}, v[{T[2][1:]}:{T[3][1:]}] offset:{L_ST}')
    a(f'v_and_b32 {T[4]}, 3, v0')
    a(f'v_lshlrev_b32 {T[4]}, 3, {T[4]}')
    a('s_waitcnt lgkmcnt(0)')
    a('s_barrier')
    stamp('stbar')
    a(f'ds_read_b64 v[{T[2][1:]}:{T[3][1:]}], {T[4]} offset:{L_ST}')
    a('s_waitcnt lgkmcnt(0)')
    a(f'v_add_f32_dpp {T[4]}, {T[2]}, {T[2]} quad_perm:[1,0,3,2] {DPPF}')
    a(f'v_add_f32_dpp {T[4]}, {T[4]}, {T[4]} quad_perm:[2,3,0,1] {DPPF}')
    a(f'v_mul_f32 {T[4]}, {f2u(0.25)}, {T[4]}')
    a(f'v_sub_f32 {T[2]}, {T[2]}, {T[4]}')
    a(f'v_mul_f32 {T[2]}, {T[2]}, {T[2]}')
    a(f'v_fmac_f32 {T[3]}, {f2u(128.0)}, {T[2]}')
    a(f'v_add_f32_dpp {T[3]}, {T[3]}, {T[3]} quad_perm:[1,0,3,2] {DPPF}')
    a(f'v_add_f32_dpp {T[3]}, {T[3]}, {T[3]} quad_perm:[2,3,0,1] {DPPF}')
    a(f'v_mul_f32 {T[5]}, {f2u(1.0/512)}, {T[3]}')
    a(f'v_max_f32 {T[5]}, 0, {T[5]}')
    ln_finish(T[4], T[5], H0, H1, PK, T[2], T[3])
    gemv(build8, PK, [f'a[{AW1+8*u}:{AW1+8*u+7}]' for u in range(8)])
    a(f'v_lshrrev_b32 {T[0]}, 1, {VG}')
    a(f'v_lshl_add_u32 {T[0]}, {VT}, 1, {T[0]}')
    a(f'v_lshlrev_b32 {T[0]}, 8, {T[0]}')
    a(f'v_lshl_add_u32 {T[0]}, {E7}, 5, {T[0]}')
    a(f'v_and_b32 {T[1]}, 1, {VG}')
    a(f'v_lshl_add_u32 {T[0]}, {T[1]}, 4, {T[0]}')
    a(f'v_lshlrev_b32 {T[1]}, 9, {VG}')
    a(f'v_lshl_add_u32 {T[1]}, {VC}, 4, {T[1]}')
    a('s_mov_b32 exec_lo, 0x00ff00ff')
    a('s_mov_b32 exec_hi, 0xff00ff00')
    a(f'ds_write_b128 {T[0]}, {acc} offset:{L_ZP}')
    a('s_mov_b64 exec, -1')
    a('s_waitcnt lgkmcnt(0)')
    a('s_barrier')
    stamp('zbar')
    for k in range(2):
        a(f'ds_read_b128 v[{GA+4*k}:{GA+4*k+3}], {T[1]} offset:{L_ZP + k*256}')
    a(f'v_lshlrev_b32 {B1R}, 16, {B1R}')
    zero_acc()
    a('s_waitcnt lgkmcnt(0)')
    for e in (0, 2): a(f'v_pk_add_f32 v[{GA+e}:{GA+e+1}], v[{GA+e}:{GA+e+1}], v[{GA+4+e}:{GA+5+e}]')
    rs4(Rr)
    Z = T[0]
    bf16r(Z, Rr[0])
    a(f'v_add_f32 {Z}, {Z}, {B1R}')
    bf16r(Z, Z)
    KK = -2.0 * 0.7978845608028654 * LOG2E
    a(f'v_mul_f32 {T[1]}, {Z}, {Z}')
    a(f'v_mov_b32 {T[2]}, {f2u(KK)}')
    a(f'v_fmac_f32 {T[2]}, {f2u(KK * 0.044715)}, {T[1]}')
    a(f'v_mul_f32 {T[2]}, {T[2]}, {Z}')
    a(f'v_exp_f32 {T[2]}, {T[2]}')
    a(f'v_add_f32 {T[2]}, 1.0, {T[2]}')
    a(f'v_rcp_f32 {T[2]}, {T[2]}')
    a(f'v_mul_f32 {Z}, {Z}, {T[2]}')
    a(f'v_mov_b32_dpp {T[1]}, {Z} row_shl:6 {DPPF}')
    a(f'v_cvt_pk_bf16_f32 {PK}, {Z}, {T[1]}')
    gemv(build4, PK, [f'a[{AW2+8*u}:{AW2+8*u+7}]' for u in range(6)])
    publish(2048)
    stamp('pubB')
    a(f's_cmp_lg_u32 {sW}, 0')
    a('s_cbranch_scc1 L_fin' if stamps else 's_cbranch_scc1 L_end')
    a(f'v_lshlrev_b32 {T[4]}, 1, {C[2]}')
    a(f'ds_read_b32 {T[6]}, {T[4]} offset:{L_H}')
    a(f'v_lshlrev_b32 {B2R}, 16, {B2R}')
    a(f's_lshl_b32 {sT0}, {sH}, 6')
    a(f's_add_u32 {sT1}, {sT0}, 0x10000')
    a(f's_lshl_b32 {sT2}, {sB}, 10')
    a(f'v_add_u32 {C[2]}, {sT2}, {C[2]}')
    a(f's_mov_b32 {sIT}, 0')
    a('L_pollB:')
    a(f'buffer_load_dwordx4 v[{GA}:{GA+3}], {VGB}, {srd(SSL)}, {sT0} offen offset:2048 sc1')
    a(f'buffer_load_dwordx4 v[{GA+4}:{GA+7}], {VGB}, {srd(SSL)}, {sT1} offen offset:2048 sc1')
    a(f's_add_u32 {sIT}, {sIT}, 1')
    a(f's_cmp_gt_u32 {sIT}, 0x40000')
    a('s_cbranch_scc1 L_pollB_done')
    a('s_waitcnt vmcnt(0)')
    a(f'v_max3_u32 {T[4]}, v{GA}, v{GA+1}, v{GA+2}')
    a(f'v_max3_u32 {T[5]}, v{GA+3}, v{GA+4}, v{GA+5}')
    a(f'v_max3_u32 {T[4]}, {T[4]}, v{GA+6}, v{GA+7}')
    a(f'v_max_u32 {T[4]}, {T[4]}, {T[5]}')
    a(f'v_cmp_eq_u32 vcc, -1, {T[4]}')
    a('s_cbranch_vccnz L_pollB')
    a('L_pollB_done:')
    a('s_waitcnt vmcnt(0) lgkmcnt(0)')
    stamp('pollB')
    for e in (0, 2): a(f'v_pk_add_f32 v[{GA+e}:{GA+e+1}], v[{GA+e}:{GA+e+1}], v[{GA+4+e}:{GA+5+e}]')
    rs4(Rr)
    a(f'v_add_f32_dpp {Rr[0]}, {Rr[0]}, {Rr[0]} row_ror:8 {DPPF}')
    a(f'v_add_f32_dpp {Rr[0]}, {Rr[0]}, {Rr[0]} row_ror:4 {DPPF}')
    bf16r(Rr[0], Rr[0])
    a(f'v_add_f32 {Rr[0]}, {Rr[0]}, {B2R}')
    bf16r(Rr[0], Rr[0])
    a(f'v_add_f32 {Rr[0]}, {Rr[0]}, {T[6]}')
    a(f'v_cvt_pk_bf16_f32 {Rr[0]}, {Rr[0]}, {Rr[0]}')
    a('s_mov_b32 exec_lo, 0x000f000f')
    a('s_mov_b32 exec_hi, 0x000f000f')
    a(f'global_store_short {C[2]}, {Rr[0]}, s[24:25]')
    if stamps:
        a('s_waitcnt vmcnt(0)')
        stamp('end')
        a('L_fin:')
        a('s_waitcnt lgkmcnt(0)')
        a('s_mov_b64 exec, 1')
        a('s_add_u32 s28, s28, 0x20000000')
        a('s_addc_u32 s29, s29, 0')
        a(f's_lshl_b32 {sT0}, s2, 2')
        a(f's_add_u32 {sT0}, {sT0}, {sW}')
        a(f's_mul_i32 {sT0}, {sT0}, {nst[0]*8}')
        a(f'v_mov_b32 {T[8]}, {sT0}')
        for k in range(nst[0]):
            a(f'v_mov_b32 v{RING+2*k}, s{STB+2*k}')
            a(f'v_mov_b32 v{RING+2*k+1}, s{STB+2*k+1}')
            a(f'global_store_dwordx2 {T[8]}, v[{RING+2*k}:{RING+2*k+1}], s[28:29] offset:{8*k}')
    a('L_end:')
    a('s_endpgm')
    a('.section .rodata,"a"')
    a('.p2align 6')
    a(f'.amdhsa_kernel {NAME}_kernel')
    a('.amdhsa_next_free_vgpr 496')
    a('.amdhsa_next_free_sgpr 102')
    a('.amdhsa_accum_offset 256')
    a('.amdhsa_group_segment_fixed_size 0')
    a('.amdhsa_kernarg_size 104')
    a('.amdhsa_user_sgpr_count 2')
    a('.amdhsa_user_sgpr_kernarg_segment_ptr 1')
    a('.amdhsa_system_sgpr_workgroup_id_x 1')
    a('.amdhsa_float_denorm_mode_32 3')
    a('.end_amdhsa_kernel')
    txt = a.finish()
    return HEADER + txt, stnames, a.npad, order

if __name__ == '__main__':
    name = sys.argv[1]; opt = json.loads(sys.argv[2]) if len(sys.argv) > 2 else {}
    st = sys.argv[3].split(',') if len(sys.argv) > 3 else False
    t, n, pad, order = gen(st, opt)
    open(name, 'w').write(t)
    print(name, 'stamps', n, 'pad', pad)
    if opt.get('show'): print(' '.join(f'{t}{u}' for t, u in order))
```

```python
import sys, struct, os, json
from asmlib import Asm
NAME = 'sequential_preLN__sliding_block_cached__dense_activation_gelu__decode'
def f2u(x): return '0x%08x' % struct.unpack('<I', struct.pack('<f', x))[0]
REF = 'cdna_kernels/' + NAME + '.s.ref'
HEADER = open(REF).read().split('; Override launch')[0] if os.path.exists(REF) else ''

def merge(main, extra):
    out = []; n = len(main); m = len(extra); j = 0
    for i, o in enumerate(main):
        out.append(o)
        while j < m and (i + 1) * m >= (j + 1) * n:
            out.append(extra[j]); j += 1
    return out + extra[j:]

def gen(stamps=False, opt=None):
    opt = opt or {}
    a0 = Asm()
    auto = dict(on=False, cnt=0, n=opt.get('yn', 40), lock=0)
    def a(text):
        a0(text)
        if auto['on'] and not auto['lock']:
            t = text.strip()
            if t.startswith('s_mov_b32 exec') or t.startswith('s_mov_b64 exec') or t.startswith('s_cmp') or t.startswith('s_cbranch'):
                raise RuntimeError('control/exec op in auto region without lock: ' + t)
            if t.startswith('v_') or t.startswith('ds_'):
                auto['cnt'] += 3 if '_dpp' in t and 'newbcast' not in t else 1
                if auto['cnt'] >= auto['n']:
                    auto['cnt'] = 0
                    auto['on'] = False
                    try_issue()
                    auto['on'] = True
    class locked:
        def __enter__(self): auto['lock'] += 1
        def __exit__(self, *x): auto['lock'] -= 1
    R = opt.get('R', 20)
    DPPF = 'row_mask:0xf bank_mask:0xf'
    RING = 64; NP = 24
    def rp(p): return RING + 8 * (p % NP)
    AQ, AW1, AW2 = 0, 128, 192
    VK, VV, VWQ, VWO, VW1, VW2, VPUB, VGA, VGB = 'v1', 'v2', 'v3', 'v4', 'v5', 'v6', 'v7', 'v8', 'v9'
    VL, VG, VC, VT = 'v10', 'v11', 'v12', 'v13'
    MA = ['v14', 'v15', 'v16', 'v17']
    MB = ['v18', 'v19', 'v20', 'v21']
    IDX, XR, B1R, B2R, CNT, VLDS, VOUT, E7 = 'v22', 'v23', 'v24', 'v25', 'v26', 'v27', 'v28', 'v29'
    Q = ['v30', 'v31', 'v32', 'v33']
    X0, X1 = 'v34', 'v35'
    AI = 30; IDX2 = 'v3'; VPB = 'v1'; VHO = 'v23'; VH = 'v26'
    ACC = 36
    A0, A1 = 40, 44
    C = ['v48', 'v49', 'v50', 'v51']
    T = [f'v{i}' for i in range(52, 64)]
    acc = f'v[{ACC}:{ACC+3}]'
    sW, sB, sH = 's3', 's30', 's31'
    SK, SV, SWQ, SWO, SW1, SW2, SSL, SB1 = 32, 36, 40, 44, 48, 52, 56, 60
    def srd(n): return f's[{n}:{n+3}]'
    sO, sQb, sT0, sT1, sT2, sT3 = 's64', 's65', 's66', 's67', 's68', 's69'
    sSLOT, sPEND, sIT, sW1b, sW2b, sOb = 's70', 's71', 's72', 's73', 's74', 's75'
    sMB0, sMB1 = 's[76:77]', 's[78:79]'
    STB = 80
    sJ = 's14'
    nst = [0]; stnames = []
    def stamp(name):
        if stamps and name in stamps:
            stnames.append(name)
            a(f's_memrealtime s[{STB+2*nst[0]}:{STB+2*nst[0]+1}]'); nst[0] += 1
        if stamps and (name + '_c') in stamps:
            stnames.append(name + '_c')
            a(f's_memtime s[{STB+2*nst[0]}:{STB+2*nst[0]+1}]'); nst[0] += 1
    L_QP, L_OP, L_SM, L_ST, L_ZP, L_H = 0, 2048, 4096, 4160, 4352, 6400
    LDS = 8448

    def wave_reduce(op, xs, sd):
        for n in (8, 4, 2, 1):
            for x in xs: a(f'{op}_dpp {x}, {x}, {x} row_ror:{n} {DPPF}')
        for x in xs: a(f'{op}_dpp {x}, {x}, {x} row_bcast:15 row_mask:0xa bank_mask:0xf')
        for x in xs: a(f'{op}_dpp {x}, {x}, {x} row_bcast:31 row_mask:0xc bank_mask:0xf')
        for x, s in zip(xs, sd): a(f'v_readlane_b32 {s}, {x}, 63')
    def bf16r(dst, src):
        a(f'v_cvt_pk_bf16_f32 {dst}, {src}, {src}')
        a(f'v_and_b32 {dst}, 0xffff0000, {dst}')
    def bf16r2(d0, d1, s0, s1):
        a(f'v_cvt_pk_bf16_f32 {d1}, {s0}, {s1}')
        a(f'v_lshlrev_b32 {d0}, 16, {d1}')
        a(f'v_and_b32 {d1}, 0xffff0000, {d1}')
    def ln_finish(mean, var, x0, x1, dst, t0, t1):
        bf16r2(mean, var, mean, var)
        a(f'v_add_f32 {var}, {f2u(1e-5)}, {var}')
        a(f'v_sub_f32 {t0}, {x0}, {mean}')
        bf16r(var, var)
        a(f'v_sqrt_f32 {var}, {var}')
        a(f'v_sub_f32 {t1}, {x1}, {mean}')
        bf16r(var, var)
        a(f'v_rcp_f32 {var}, {var}')
        bf16r2(t0, t1, t0, t1)
        a(f'v_mul_f32 {t0}, {t0}, {var}')
        a(f'v_mul_f32 {t1}, {t1}, {var}')
        a(f'v_cvt_pk_bf16_f32 {dst}, {t0}, {t1}')
    kk = [0]
    def build4(src, lane):
        A = A0 if kk[0] % 2 == 0 else A1; kk[0] += 1
        for r in range(4):
            a(f'v_and_b32_dpp v{A+r}, {src}, {MA[r]} row_newbcast:{lane} {DPPF}')
        return A
    def build8(src, lane):
        A = A0 if kk[0] % 2 == 0 else A1
        x = T[10 + kk[0] % 2]; kk[0] += 1
        a(f'v_mov_b32_dpp {x}, {src} row_newbcast:{lane} row_mask:0xf bank_mask:0x3')
        a(f'v_mov_b32_dpp {x}, {src} row_newbcast:{lane+8} row_mask:0xf bank_mask:0xc')
        for r in range(4):
            a(f'v_and_b32 v{A+r}, {x}, {MB[r]}')
        return A
    def smf(A, B):
        a(f'v_smfmac_f32_16x16x64_bf16 {acc}, v[{A}:{A+3}], {B}, {IDX}')
    def zero_acc():
        for r in range(4): a(f'v_mov_b32 v{ACC+r}, 0')
    def gemv(build, src, Bs):
        n = len(Bs)
        A = build(src, 0)
        for k in range(n):
            An = build(src, k + 1) if k + 1 < n else None
            smf(A, Bs[k]); A = An
    def rs4(Rr):
        a(f'v_permlane32_swap_b32 {Rr[0]}, {Rr[2]}')
        a(f'v_permlane32_swap_b32 {Rr[1]}, {Rr[3]}')
        a(f'v_add_f32 {Rr[0]}, {Rr[0]}, {Rr[2]}')
        a(f'v_add_f32 {Rr[1]}, {Rr[1]}, {Rr[3]}')
        a(f'v_permlane16_swap_b32 {Rr[0]}, {Rr[1]}')
        a(f'v_add_f32 {Rr[0]}, {Rr[0]}, {Rr[1]}')
    def publish(off):
        a('s_mov_b32 exec_hi, 0')
        for r in range(4): a(f'v_min_u32 {T[r]}, -2, v{ACC+r}')
        a(f'buffer_store_dwordx4 v[{T[0][1:]}:{T[3][1:]}], {VPUB}, {srd(SSL)}, {sSLOT} offen offset:{off} sc1')
        a('s_mov_b32 exec_hi, -1')

    a(f'; @launch grid=(256,1,1) block=(256,1,1) lds={LDS}')
    a('.amdgcn_target "amdgcn-amd-amdhsa--gfx950"')
    a('.text')
    a(f'.globl {NAME}_kernel')
    a('.p2align 8')
    a(f'.type {NAME}_kernel,@function')
    a(f'{NAME}_kernel:')
    a('s_cmp_ge_u32 s2, 256')
    a('s_cbranch_scc1 L_end')
    a('s_load_dwordx8 s[4:11], s[0:1], 0')
    a('s_load_dwordx8 s[12:19], s[0:1], 32')
    a('s_load_dwordx8 s[20:27], s[0:1], 64')
    a('s_load_dwordx2 s[28:29], s[0:1], 96')
    stamp('start')
    if opt.get('diag_spin'): a('s_memrealtime s[96:97]')
    a(f'v_lshrrev_b32 {VT}, 6, v0')
    a(f'v_and_b32 {VL}, 63, v0')
    a(f'v_readfirstlane_b32 {sW}, {VT}')
    a(f'v_lshrrev_b32 {VG}, 4, {VL}')
    a(f'v_and_b32 {VC}, 15, v0')
    a(f's_lshr_b32 {sB}, s2, 5')
    a(f's_and_b32 {sH}, s2, 31')
    a(f'v_lshlrev_b32 {VK}, 11, {VT}')
    a(f'v_lshl_add_u32 {VV}, {VL}, 4, {VK}')
    a(f'v_lshl_add_u32 {VK}, {VG}, 9, {VK}')
    a(f'v_lshl_add_u32 {VK}, {VC}, 4, {VK}')
    GH, GL = T[0], T[1]
    a(f'v_lshrrev_b32 {GH}, 1, {VG}')
    a(f'v_and_b32 {GL}, 1, {VG}')
    a(f'v_lshlrev_b32 {VWQ}, 13, {VG}')
    a(f'v_lshl_add_u32 {VWQ}, {VC}, 4, {VWQ}')
    a(f's_lshl_b32 {sT0}, {sB}, 10')
    a(f'v_lshl_add_u32 {T[2]}, {VL}, 4, {sT0}')
    a(f'v_lshlrev_b32 {T[3]}, 8, {VT}')
    a(f'v_lshl_add_u32 {VGA}, {VC}, 4, {T[3]}')
    a(f'v_lshl_add_u32 {T[3]}, {VG}, 2, {VGA}')
    a(f'v_add_u32 {CNT}, {sT0}, {T[3]}')
    a(f'v_lshlrev_b32 {VOUT}, 1, {T[3]}')
    a(f'v_lshlrev_b32 {VPUB}, 4, v0')
    for r in range(4): a(f'v_mov_b32 v{A0+r}, -1')
    a(f's_lshl_b32 {sT1}, s2, 20')
    a(f's_add_u32 {sT1}, {sT1}, 0xC0000')
    a(f's_lshl_b32 {sSLOT}, {sH}, 12')
    a(f's_lshl_b32 {sT2}, {sB}, 17')
    a(f's_lshl_b32 {sQb}, {sW}, 20')
    a(f's_lshl_b32 {sT3}, {sH}, 8')
    a(f's_add_u32 {sQb}, {sQb}, {sT3}')
    for n, sz in ((SK, 0x40000), (SV, 0x40000), (SWQ, 0x400000), (SWO, 0x400000), (SW1, 512 * 2752), (SW2, 1376 * 1024), (SSL, 0x20000), (SB1, 2752)):
        a(f's_mov_b32 s{n+2}, {sz:#x}')
        a(f's_mov_b32 s{n+3}, 0x20000')
    a('s_waitcnt lgkmcnt(0)')
    a(f's_add_u32 s{SK}, s6, {sT1}')
    a(f's_addc_u32 s{SK+1}, s7, 0')
    a(f's_mov_b32 s{SWQ}, s10')
    a(f's_mov_b32 s{SWQ+1}, s11')

    vm = []
    def issue(tag, text): a(text); vm.append(tag)
    def waitfor(tag):
        if tag not in vm: return
        i = vm.index(tag)
        a(f's_waitcnt vmcnt({len(vm) - 1 - i})')
        del vm[:i + 1]
    def arrived(tag): return tag in issued and tag not in vm
    issued = set()
    ringuse = {}
    ringn = [0]
    slot_of = {}
    def issue_pair(op):
        t, u = op
        if t in 'KV':
            p = ringn[0]; ringn[0] += 1
            assert ringuse.get(p % NP) is None, f'ring slot busy at {op}: {ringuse[p % NP]}'
            ringuse[p % NP] = op; slot_of[op] = rp(p)
            b = rp(p)
            a(f's_mov_b32 {sO}, {u*8192}')
            if t == 'K':
                issue((t, u, 0), f'buffer_load_dwordx4 v[{b}:{b+3}], {VK}, {srd(SK)}, {sO} offen nt')
                issue((t, u, 1), f'buffer_load_dwordx4 v[{b+4}:{b+7}], {VK}, {srd(SK)}, {sO} offen offset:256 nt')
            else:
                issue((t, u, 0), f'buffer_load_dwordx4 v[{b}:{b+3}], {VV}, {srd(SV)}, {sO} offen nt')
                issue((t, u, 1), f'buffer_load_dwordx4 v[{b+4}:{b+7}], {VV}, {srd(SV)}, {sO} offen offset:1024 nt')
        elif t == 'G':
            b = GA + 8 * u
            a(f's_mov_b32 {sO}, {u*4096}')
            issue((t, u, 0), f'buffer_load_dwordx4 v[{b}:{b+3}], {VGA}, {srd(SSL)}, {sO} offen sc1')
            a(f's_mov_b32 {sO}, {u*4096+65536}')
            issue((t, u, 1), f'buffer_load_dwordx4 v[{b+4}:{b+7}], {VGA}, {srd(SSL)}, {sO} offen sc1')
        else:
            base, vo, sr, sb, offs = {
                'Q': (AQ, VWQ, SWQ, sQb, [(2 * u + L) * 32768 for L in (0, 1)]),
                'O': (AQ, VWO, SWO, sOb, [(8 * u + 4 * L) * 1024 for L in (0, 1)]),
                'F': (AW1, VW1, SW1, sW1b, [(2 * u + L) * 11008 for L in (0, 1)]),
                'S': (AW2, VW2, SW2, sW2b, [(2 * u + L) * 2048 for L in (0, 1)]),
            }[t]
            for L in (0, 1):
                b = base + 8 * u + 4 * L
                a(f's_add_u32 {sO}, {sb}, {offs[L]}')
                issue((t, u, L), f'buffer_load_dwordx4 a[{b}:{b+3}], {vo}, {srd(sr)}, {sO} offen nt')
        issued.add((t, u, 0)); issued.add((t, u, 1))
    def free_slot(op):
        for k, v in ringuse.items():
            if v == op: ringuse[k] = None

    K = [('K', u) for u in range(32)]; V = [('V', u) for u in range(32)]
    Qo = [('Q', u) for u in range(16)]; Oo = [('O', u) for u in range(16)]
    Fo = [('F', u) for u in range(8)]; So = [('S', u) for u in range(6)]
    nq = opt.get('nq', 14)
    nf = opt.get('nf', 8)
    order = merge(Qo, K[:nq]) if nq < 16 else merge(K[:nq], Qo)
    order.remove(K[0]); order.insert(0, K[0])
    if opt.get('even', 1):
        rest = K[nq:] + V
        no = len(rest) - opt.get('tailv', 2)
        ex = Fo + So + Oo if opt.get('even', 1) == 1 else Fo[:4] + Oo + Fo[4:] + So
        order += merge(rest[:no], ex) + rest[no:]
    else:
        order += merge(Fo + So, K[nq:nq + nf])
        rest = K[nq + nf:] + V
        no = opt.get('no', len(rest) - 6)
        order += merge(rest[:no], Oo) + rest[no:]
    RP = R // 2

    P = dict(pos=0, setup=False)
    state = dict(q=0, k=0, v=0, qready=False, pready=False)
    def can_issue():
        if P['pos'] >= len(order): return False
        op = order[P['pos']]
        if len(vm) + 2 > 58: return False
        if op[0] in 'VOFS' and not P['setup']: return False
        if op[0] in 'KV' and ringuse.get(ringn[0] % NP) is not None: return False
        if op[0] == 'O' and state['q'] <= op[1]: return False
        return True
    def try_issue():
        if can_issue():
            issue_pair(order[P['pos']]); P['pos'] += 1
            return True
        return False
    issue('X8', f'global_load_dwordx4 v[{T[4][1:]}:{T[7][1:]}], {T[2]}, s[4:5]')
    issue('XR', f'global_load_dword {XR}, {CNT}, s[4:5]')
    for _ in range(opt.get('n0', 6)): try_issue()
    a(f's_add_u32 s{SSL}, s28, {sT2}')
    a(f's_addc_u32 s{SSL+1}, s29, 0')
    issue('MK', f'buffer_store_dwordx4 v[{A0}:{A0+3}], {VPUB}, {srd(SSL)}, {sSLOT} offen sc1')
    stamp('issued')
    a(f's_add_u32 s{SV}, s8, {sT1}')
    a(f's_addc_u32 s{SV+1}, s9, 0')
    for n, p in ((SWO, 12), (SW1, 16), (SW2, 20), (SB1, 18)):
        a(f's_mov_b32 s{n}, s{p}')
        a(f's_mov_b32 s{n+1}, s{p+1}')
    a('s_mov_b32 s76, 0xaaaaaaaa'); a('s_mov_b32 s77, 0xaaaaaaaa')
    a('s_mov_b32 s78, 0xcccccccc'); a('s_mov_b32 s79, 0xcccccccc')
    a(f's_lshl_b32 {sOb}, {sH}, 17')
    if opt.get('jmap', 1):
        a(f's_and_b32 {sJ}, {sH}, 7')
        a(f's_lshl_b32 {sJ}, {sJ}, 2')
        a(f's_lshr_b32 {sT0}, {sH}, 3')
        a(f's_add_u32 {sJ}, {sJ}, {sT0}')
    else:
        a(f's_mov_b32 {sJ}, {sH}')
    a(f's_mul_i32 {sW1b}, {sJ}, 96')
    a(f's_mul_i32 {sW2b}, {sJ}, {48*1024}')
    HALF = T[2]
    a(f'v_and_b32 {E7}, 7, v0')
    a(f'v_bfe_u32 {HALF}, v0, 3, 1')
    a(f'v_and_b32 {IDX}, 3, v0')
    a(f'v_mul_u32_u24 {IDX}, 0x5555, {IDX}')
    a(f'v_mov_b32 {T[8]}, 0xffff')
    a(f'v_mov_b32 {T[9]}, 0xffff0000')
    a(f'v_lshrrev_b32 {T[3]}, 2, {VC}')
    a(f'v_cmp_eq_u32 vcc, 0, {T[3]}')
    a(f'v_cndmask_b32 {MA[0]}, 0, {T[8]}, vcc'); a(f'v_cndmask_b32 {MA[2]}, 0, {T[9]}, vcc')
    a(f'v_cmp_eq_u32 vcc, 1, {T[3]}')
    a(f'v_cndmask_b32 {MA[1]}, 0, {T[8]}, vcc'); a(f'v_cndmask_b32 {MA[3]}, 0, {T[9]}, vcc')
    a(f'v_cmp_gt_u32 vcc, 4, {E7}')
    a(f'v_cndmask_b32 {MB[0]}, 0, {T[8]}, vcc'); a(f'v_cndmask_b32 {MB[2]}, 0, {T[9]}, vcc')
    a(f'v_xor_b32 {MB[1]}, {T[8]}, {MB[0]}'); a(f'v_xor_b32 {MB[3]}, {T[9]}, {MB[2]}')
    a(f'v_lshlrev_b32 {T[3]}, 8, {VT}')
    a(f'v_lshl_add_u32 {T[3]}, {VC}, 4, {T[3]}')
    a(f'v_lshl_add_u32 {VWO}, {VG}, 10, {T[3]}')
    a(f'v_mul_u32_u24 {VW2}, 24, {GL}')
    a(f'v_add_u32 {VW2}, {VW2}, {GH}')
    a(f'v_lshl_add_u32 {VW2}, {VW2}, 10, {T[3]}')
    a(f'v_lshl_add_u32 {VW1}, {HALF}, 6, {VG}')
    a(f'v_lshl_add_u32 {VW1}, {VT}, 7, {VW1}')
    a(f'v_mul_u32_u24 {VW1}, 2752, {VW1}')
    a(f'v_lshl_add_u32 {VW1}, {E7}, 4, {VW1}')
    a(f's_mul_i32 {sT0}, {sJ}, 6')
    a(f's_sub_i32 {sT0}, 172, {sT0}')
    a(f's_min_i32 {sT0}, {sT0}, 6')
    a(f'v_cmp_gt_i32 vcc, {sT0}, {E7}')
    a(f'v_mov_b32 {T[3]}, 0x7fff0000')
    a(f'v_cndmask_b32 {VW1}, {T[3]}, {VW1}, vcc')
    a(f'v_lshl_add_u32 {VGB}, {VG}, 3, {VGA}')
    a(f'v_lshl_add_u32 {VGA}, {VG}, 15, {VGA}')
    a(f'v_lshlrev_b32 {VLDS}, 9, {VT}')
    a(f'v_lshl_add_u32 {VLDS}, {VC}, 5, {VLDS}')
    a(f'v_lshl_add_u32 {VLDS}, {VG}, 4, {VLDS}')
    zero_acc()
    P['setup'] = True
    while P['pos'] < opt.get('n1', 12): try_issue()
    waitfor('XR')
    auto['on'] = True
    X = [C[0], C[1], C[2], C[3], T[8], T[9], T[10], T[11]]
    for k in range(4):
        a(f'v_lshlrev_b32 {X[2*k]}, 16, {T[4+k]}')
        a(f'v_and_b32 {X[2*k+1]}, 0xffff0000, {T[4+k]}')
    a(f'v_lshlrev_b32 {X0}, 16, {XR}')
    a(f'v_and_b32 {X1}, 0xffff0000, {XR}')
    a(f'v_add_f32 {T[4]}, {X[0]}, {X[1]}'); a(f'v_add_f32 {T[5]}, {X[2]}, {X[3]}')
    a(f'v_add_f32 {T[6]}, {X[4]}, {X[5]}'); a(f'v_add_f32 {T[7]}, {X[6]}, {X[7]}')
    a(f'v_add_f32 {T[4]}, {T[4]}, {T[5]}'); a(f'v_add_f32 {T[6]}, {T[6]}, {T[7]}')
    a(f'v_add_f32 {T[4]}, {T[4]}, {T[6]}')
    wave_reduce('v_add_f32', [T[4]], [sT0])
    a(f'v_mov_b32 {T[5]}, {f2u(1.0/512)}')
    a(f'v_mul_f32 {T[5]}, {sT0}, {T[5]}')
    for k in range(8): a(f'v_sub_f32 {X[k]}, {X[k]}, {T[5]}')
    a(f'v_mul_f32 {T[4]}, {X[0]}, {X[0]}')
    for k in range(1, 8): a(f'v_fmac_f32 {T[4]}, {X[k]}, {X[k]}')
    wave_reduce('v_add_f32', [T[4]], [sT0])
    a(f'v_mov_b32 {T[6]}, {f2u(1.0/512)}')
    a(f'v_mul_f32 {T[6]}, {sT0}, {T[6]}')
    XN = XR
    ln_finish(T[5], T[6], X0, X1, XN, T[8], T[9])

    U = [[T[0], T[1], T[2], T[3]], [T[4], T[5], T[6], T[7]]]
    TMP = [[T[8], T[9]], [T[10], T[11]]]
    lane_of = {}
    def do_q(u):
        A = build4(XN, u)
        smf(A, f'a[{AQ+8*u}:{AQ+8*u+7}]')
    def q_finish():
        try_issue()
        with locked():
            a('s_mov_b32 exec_hi, 0')
            a(f'ds_write_b128 {VLDS}, {acc} offset:{L_QP}')
            a('s_mov_b32 exec_hi, -1')
        a(f'v_lshlrev_b32 {CNT}, 5, {VC}')
        a(f'v_mov_b32 {VPUB}, {VGB}')
        a(f'v_lshlrev_b32 {VGB}, 4, {VL}')
        a('s_waitcnt lgkmcnt(0)')
        a('s_barrier')
        stamp('qbar')
        with locked():
            a(f's_cmp_lg_u32 {sW}, 0')
            a('s_cbranch_scc1 L_nosig')
            a(f's_lshl_b32 {sT0}, {sB}, 5')
            a(f'v_mov_b32 {T[0]}, {sT0}')
            a(f'v_mov_b32 {T[1]}, 1')
            a('s_mov_b64 exec, 1')
            a(f'global_atomic_add {T[0]}, {T[1]}, s[26:27] sc1')
            a('s_mov_b64 exec, -1')
            a('L_nosig:')
        try_issue()
        B0 = 40
        for half in range(2):
            for p in range(4):
                d = B0 + 4 * p if p < 3 else int(T[4][1:])
                a(f'ds_read_b128 v[{d}:{d+3}], {CNT} offset:{L_QP + p*512 + half*16}')
            a('s_waitcnt lgkmcnt(0)')
            d3 = int(T[4][1:])
            for e in range(4):
                a(f'v_add_f32 v{B0+e}, v{B0+e}, v{B0+4+e}')
                a(f'v_add_f32 v{B0+8+e}, v{B0+8+e}, v{d3+e}')
            for e in range(4): a(f'v_add_f32 v{B0+e}, v{B0+e}, v{B0+8+e}')
            a(f'v_cvt_pk_bf16_f32 {Q[2*half]}, v{B0}, v{B0+1}')
            a(f'v_cvt_pk_bf16_f32 {Q[2*half+1]}, v{B0+2}, v{B0+3}')
        zero_acc()
    def do_k(u):
        b = slot_of[('K', u)]
        i = u % 16
        S = []
        for ch in range(2):
            S.append([U[ch][i // 4], TMP[ch][0], TMP[ch][1], TMP[ch][0]][i % 4])
        for r in range(4):
            for ch in range(2):
                a(f'v_dot2_f32_bf16 {S[ch]}, v{b+4*ch+r}, {Q[r]}, {"0" if r == 0 else S[ch]}')
        free_slot(('K', u))
        if i % 2 == 1:
            for ch in range(2):
                sa = U[ch][i // 4] if i % 4 == 1 else TMP[ch][1]
                a(f'v_add_f32_dpp {sa}, {sa}, {sa} row_ror:8 row_mask:0xf bank_mask:0x3')
            for ch in range(2):
                sa = U[ch][i // 4] if i % 4 == 1 else TMP[ch][1]
                sb = TMP[ch][0]
                a(f'v_add_f32_dpp {sa}, {sb}, {sb} row_ror:8 row_mask:0xf bank_mask:0xc')
        if i % 4 == 3:
            for ch in range(2):
                ta = U[ch][i // 4]
                a(f'v_add_f32_dpp {ta}, {ta}, {ta} row_half_mirror row_mask:0xf bank_mask:0x5')
            for ch in range(2):
                ta, tb = U[ch][i // 4], TMP[ch][1]
                a(f'v_add_f32_dpp {ta}, {tb}, {tb} row_half_mirror row_mask:0xf bank_mask:0xa')
        lane_of[u] = ((i & 1) << 3) | (((i >> 1) & 1) << 2) | ((i >> 2) & 1) | (((i >> 3) & 1) << 1)
        if i == 15:
            for ch in range(2):
                for x in U[ch]: a(f'v_add_f32_dpp {x}, {x}, {x} quad_perm:[1,0,3,2] {DPPF}')
            for ch in range(2):
                a(f'v_cndmask_b32 {U[ch][0]}, {U[ch][0]}, {U[ch][1]}, {sMB0}')
                a(f'v_cndmask_b32 {U[ch][2]}, {U[ch][2]}, {U[ch][3]}, {sMB0}')
            for ch in range(2):
                for x in (U[ch][0], U[ch][2]): a(f'v_add_f32_dpp {x}, {x}, {x} quad_perm:[2,3,0,1] {DPPF}')
            for ch in range(2):
                a(f'v_cndmask_b32 {C[2*(u//16)+ch]}, {U[ch][0]}, {U[ch][2]}, {sMB1}')
    LOG2E = 1.4426950408889634
    def softmax():
        stamp('qkdone')
        for k in (0, 2):
            bf16r2(C[k], C[k+1], C[k], C[k+1])
        for k in range(4): a(f'v_mul_f32 {C[k]}, {f2u(128 ** -0.5)}, {C[k]}')
        for k in (0, 2):
            bf16r2(C[k], C[k+1], C[k], C[k+1])
        a(f'v_max_f32 {T[0]}, {C[0]}, {C[1]}')
        a(f'v_max3_f32 {T[0]}, {T[0]}, {C[2]}, {C[3]}')
        wave_reduce('v_max_f32', [T[0]], [sT0])
        for k in range(4): a(f'v_subrev_f32 {T[k]}, {sT0}, {C[k]}')
        for k in range(4): a(f'v_mul_f32 {T[k]}, {f2u(LOG2E)}, {T[k]}')
        for k in range(4): a(f'v_exp_f32 {T[k]}, {T[k]}')
        a(f'v_add_f32 {T[0]}, {T[0]}, {T[1]}')
        a(f'v_add_f32 {T[2]}, {T[2]}, {T[3]}')
        a(f'v_add_f32 {T[0]}, {T[0]}, {T[2]}')
        wave_reduce('v_add_f32', [T[0]], [sT1])
        a(f'v_mov_b32 {T[0]}, {sT0}')
        a(f'v_mov_b32 {T[1]}, {sT1}')
        a(f'v_lshlrev_b32 {T[2]}, 3, {VT}')
        a(f'ds_write_b64 {T[2]}, v[{T[0][1:]}:{T[1][1:]}] offset:{L_SM}')
        a(f'v_and_b32 {T[2]}, 3, v0')
        a(f'v_lshlrev_b32 {T[2]}, 3, {T[2]}')
        a('s_waitcnt lgkmcnt(0)')
        a('s_barrier')
        a(f'ds_read_b64 v[{T[0][1:]}:{T[1][1:]}], {T[2]} offset:{L_SM}')
        try_issue()
        a('s_waitcnt lgkmcnt(0)')
        a(f'v_max_f32_dpp {T[2]}, {T[0]}, {T[0]} quad_perm:[1,0,3,2] {DPPF}')
        a(f'v_max_f32_dpp {T[2]}, {T[2]}, {T[2]} quad_perm:[2,3,0,1] {DPPF}')
        a(f'v_sub_f32 {T[0]}, {T[0]}, {T[2]}')
        for k in range(4): a(f'v_sub_f32 {C[k]}, {C[k]}, {T[2]}')
        a(f'v_mul_f32 {T[0]}, {f2u(LOG2E)}, {T[0]}')
        for k in range(4): a(f'v_mul_f32 {C[k]}, {f2u(LOG2E)}, {C[k]}')
        a(f'v_exp_f32 {T[0]}, {T[0]}')
        for k in range(4): a(f'v_exp_f32 {C[k]}, {C[k]}')
        a(f'v_mul_f32 {T[1]}, {T[1]}, {T[0]}')
        a(f'v_add_f32_dpp {T[1]}, {T[1]}, {T[1]} quad_perm:[1,0,3,2] {DPPF}')
        a(f'v_add_f32_dpp {T[1]}, {T[1]}, {T[1]} quad_perm:[2,3,0,1] {DPPF}')
        a(f'v_rcp_f32 {T[1]}, {T[1]}')
        for k in range(4): a(f'v_mul_f32 {C[k]}, {C[k]}, {T[1]}')
        a(f'v_cvt_pk_bf16_f32 {C[0]}, {C[0]}, {C[1]}')
        a(f'v_cvt_pk_bf16_f32 {C[1]}, {C[2]}, {C[3]}')
        stamp('smdone')
        a(f's_lshl_b32 {sT0}, {sB}, 5')
        a(f'v_mov_b32 {T[0]}, {sT0}')
        issue('CNT', f'global_load_dword {CNT}, {T[0]}, s[26:27] sc1')
        a(f'v_lshl_add_u32 {T[1]}, {VC}, 2, {VG}')
        a(f's_mul_i32 {sT0}, {sJ}, 48')
        a(f'v_add_lshl_u32 {T[2]}, {T[1]}, {sT0}, 1')
        issue('B1', f'buffer_load_ushort {B1R}, {T[2]}, {srd(SB1)}, 0 offen')
        a(f'v_and_b32 {T[1]}, 15, {T[1]}')
        a(f's_lshl_b32 {sT0}, {sH}, 4')
        a(f'v_add_lshl_u32 {C[2]}, {T[1]}, {sT0}, 1')
        issue('B2', f'global_load_ushort {B2R}, {C[2]}, s[22:23]')
        issued.update(['CNT', 'B1', 'B2'])
        a(f'v_cmp_gt_u32 vcc, 8, {VC}')
        a(f'v_mov_b32 {T[3]}, 0x3f80')
        a(f'v_bfe_u32 {T[4]}, v0, 2, 1')
        a(f'v_cndmask_b32 v{AI}, 0, {T[3]}, vcc')
        a(f'v_and_b32 {T[5]}, 1, v0')
        a(f'v_xor_b32 v{AI+1}, {T[3]}, v{AI}')
        a(f'v_mov_b32 v{AI+2}, v{AI}')
        a(f'v_mov_b32 v{AI+3}, v{AI+1}')
        a(f'v_lshl_add_u32 {IDX2}, {T[4]}, 1, {T[5]}')
        a(f'v_mul_u32_u24 {IDX2}, 0x5555, {IDX2}')
        a(f'v_lshrrev_b32 {VPB}, 1, {VC}')
        a(f'v_lshl_add_u32 {VPB}, {VT}, 3, {VPB}')
        a(f'v_lshlrev_b32 {VPB}, 12, {VPB}')
        a(f'v_lshl_add_u32 {VPB}, {T[5]}, 5, {VPB}')
        a(f'v_lshl_add_u32 {VPB}, {VG}, 4, {VPB}')
        a(f'v_and_b32 {VHO}, 31, v0')
        a(f'v_lshlrev_b32 {VHO}, 12, {VHO}')
    def do_v(u, wait=False):
        b = slot_of[('V', u)]
        A = build4(C[u // 16], lane_of[u])
        if wait: waitfor(('V', u, 1))
        smf(A, f'v[{b}:{b+7}]')
        free_slot(('V', u))
    def cnt_check():
        a(f'v_readfirstlane_b32 {sT0}, {CNT}')
        a(f's_cmp_ge_u32 {sT0}, 32')
        a('s_cbranch_scc1 L_cntok')
        a(f's_mov_b32 {sIT}, 0')
        a(f's_lshl_b32 {sT0}, {sB}, 5')
        a(f'v_mov_b32 {T[0]}, {sT0}')
        a('L_cntspin:')
        a(f'global_load_dword {CNT}, {T[0]}, s[26:27] sc1')
        a('s_waitcnt vmcnt(0)')
        a(f'v_readfirstlane_b32 {sT0}, {CNT}')
        a(f's_add_u32 {sIT}, {sIT}, 1')
        a(f's_cmp_gt_u32 {sIT}, 0x40000')
        a('s_cbranch_scc1 L_cntok')
        a('s_sleep 4')
        a(f's_cmp_lt_u32 {sT0}, 32')
        a('s_cbranch_scc1 L_cntspin')
        a('L_cntok:')
    burst = opt.get('burst', 3)
    cnt_done = [False]
    forced = []
    def consume():
        while state['q'] < 16 and arrived(('Q', state['q'], 1)):
            do_q(state['q']); state['q'] += 1
            if state['q'] == 16: q_finish(); state['qready'] = True; return
        n = 0
        while state['qready'] and state['k'] < 32 and arrived(('K', state['k'], 1)) and n < burst:
            do_k(state['k']); state['k'] += 1; n += 1
            if state['k'] == 32: softmax(); state['pready'] = True; return
        while state['pready'] and state['v'] < 32 and arrived(('V', state['v'], 1)) and n < burst:
            do_v(state['v']); state['v'] += 1; n += 1
        if not cnt_done[0] and arrived('CNT'):
            with locked(): cnt_check()
            cnt_done[0] = True
    while P['pos'] < len(order):
        ok = try_issue()
        auto['cnt'] = 0
        lag = P['pos'] - 1 - RP
        if not ok:
            nxt = [t for t in vm if isinstance(t, tuple) and t[2] == 1]
            before = (state['q'], state['k'], state['v'])
            consume()
            if before == (state['q'], state['k'], state['v']):
                forced.append(order[P['pos']])
                waitfor(nxt[0]); consume()
            continue
        if lag >= 0:
            t, u = order[lag]
            waitfor((t, u, 1))
        consume()
    auto['on'] = False
    assert state['pready'] and cnt_done[0], state
    stamp('allissued')
    free = [p for p in range(NP) if ringuse.get(p) is None]
    GA = None
    for s0 in range(NP - 3):
        if all(p in free for p in range(s0, s0 + 4)): GA = RING + 8 * s0; break
    assert GA is not None, (free, state)
    HS = 4
    perwave = opt.get('perwave', 1)
    a(f's_lshl_b32 {sT2}, {sW}, 7')
    if not perwave: a(f's_mov_b32 {sT2}, 0')
    a(f's_add_u32 {sT1}, {sSLOT}, {sT2}')
    a(f's_add_u32 s12, s{SSL}, {sT1}')
    a(f's_addc_u32 s13, s{SSL+1}, 0')
    a(f's_and_b32 {sT0}, {sH}, 7')
    a(f's_lshl_b32 {sT0}, {sT0}, 2')
    a(f's_lshr_b32 {sT1}, {sH}, 3')
    a(f's_add_u32 {sT0}, {sT0}, {sT1}')
    a(f's_add_u32 s15, {sT0}, {sT2}')
    if not perwave:
        a(f's_cmp_eq_u32 {sW}, {opt.get("hw", 0)}')
        a(f's_cselect_b32 s15, s15, 0x1000000')
    def hint_load():
        a(f's_load_dwordx8 s[{HS}:{HS+7}], s[12:13], 1024 glc')
    def hint_store():
        a('s_mov_b32 exec_hi, 0')
        a(f'buffer_store_byte {T[9]}, {VHO}, {srd(SSL)}, s15 offen offset:1024 sc1')
        a('s_mov_b32 exec_hi, -1')
    hpos = opt.get('hpos', 16)
    a(f's_mov_b32 {sPEND}, 0xff')
    a(f's_mov_b32 {sIT}, 0')
    a(f'v_lshlrev_b32 {T[8]}, 3, {VG}')
    a(f'v_lshl_add_u32 {T[8]}, {VC}, 5, {T[8]}')
    a(f'v_mov_b32 {T[9]}, 0')
    while state['v'] < 32:
        do_v(state['v'], wait=True); state['v'] += 1
    stamp('pvdone')
    a('s_mov_b32 exec_hi, 0')
    a(f'ds_write_b128 {VLDS}, {acc} offset:{L_OP}')
    a('s_mov_b32 exec_hi, -1')
    a('s_waitcnt lgkmcnt(0)')
    a('s_barrier')
    stamp('obar')
    for p in range(4):
        a(f'ds_read_b64 v[{T[2*p][1:]}:{T[2*p+1][1:]}], {T[8]} offset:{L_OP + p*512}')
    waitfor(('O', 15, 1))
    vm.clear()
    if hpos == 0: hint_store()
    zero_acc()
    a('s_waitcnt lgkmcnt(0)')
    hint_load()
    for e in range(2):
        a(f'v_add_f32 {T[e]}, {T[e]}, {T[2+e]}')
        a(f'v_add_f32 {T[4+e]}, {T[4+e]}, {T[6+e]}')
    for e in range(2): a(f'v_add_f32 {T[e]}, {T[e]}, {T[4+e]}')
    PK = T[8]
    a(f'v_cvt_pk_bf16_f32 {PK}, {T[0]}, {T[1]}')
    Bs = [f'a[{AQ+8*u}:{AQ+8*u+7}]' for u in range(16)]
    A = build4(PK, 0)
    for k in range(16):
        An = build4(PK, k + 1) if k + 1 < 16 else None
        smf(A, Bs[k]); A = An
        if hpos > 0 and k + 1 == hpos: hint_store()
    a('s_mov_b32 exec_hi, 0')
    a(f'v_cvt_pk_bf16_f32 {T[0]}, v{ACC}, v{ACC+1}')
    a(f'v_cvt_pk_bf16_f32 {T[1]}, v{ACC+2}, v{ACC+3}')
    a(f'v_min_u32 {T[0]}, -2, {T[0]}')
    a(f'v_min_u32 {T[1]}, -2, {T[1]}')
    a(f'buffer_store_dwordx2 v[{T[0][1:]}:{T[1][1:]}], {VPUB}, {srd(SSL)}, {sSLOT} offen sc1')
    a('s_mov_b32 exec_hi, -1')
    if hpos > 16: hint_store()
    stamp('pubA')
    if opt.get('stopA'): a('s_branch L_fin')
    def ld(u):
        b = GA + 4 * u
        a(f's_mov_b32 {sO}, {u*4096}')
        a(f'buffer_load_dwordx4 v[{b}:{b+3}], {VGA}, {srd(SSL)}, {sO} offen sc1')
    a('L_hintA:')
    a('s_waitcnt lgkmcnt(0)')
    for hi in range(2):
        a(f's_and_b32 {sT1}, {sPEND}, {0xf << (4*hi)}')
        a(f's_cbranch_scc0 L_ha_h{hi}')
        for u in range(4 * hi, 4 * hi + 4):
            a(f's_bitcmp0_b32 {sPEND}, {u}')
            a(f's_cselect_b32 {sT0}, 1, s{HS+u}')
            a(f's_cmp_lg_u32 {sT0}, 0')
            a(f's_cbranch_scc1 L_ha{u}')
            a(f's_bitset0_b32 {sPEND}, {u}')
            if opt.get('dA', 0): a(f's_sleep {opt["dA"]}')
            ld(u)
            a(f'L_ha{u}:')
        a(f'L_ha_h{hi}:')
    a(f's_cmp_eq_u32 {sPEND}, 0')
    a('s_cbranch_scc1 L_sumA')
    if opt.get('sleepA', 0): a(f's_sleep {opt["sleepA"]}')
    hint_load()
    a(f's_add_u32 {sIT}, {sIT}, 1')
    a(f's_cmp_le_u32 {sIT}, 0x2000')
    a('s_cbranch_scc1 L_hintA')
    a('s_waitcnt lgkmcnt(0)')
    a('L_slowA:')
    for u in range(8): ld(u)
    a('L_sumA:')
    zero_acc()
    a('s_waitcnt vmcnt(0)')
    for p in range(4):
        a(f'v_smfmac_f32_16x16x64_bf16 {acc}, v[{AI}:{AI+3}], v[{GA+8*p}:{GA+8*p+7}], {IDX2}')
    a(f'v_cmp_u_f32 vcc, v{ACC}, v{ACC+1}')
    a('s_cbranch_vccz L_pollA_done')
    a(f'v_max3_u32 {T[4]}, v{GA}, v{GA+1}, v{GA+2}')
    for k in range(3, 31, 2):
        a(f'v_max3_u32 {T[4]}, {T[4]}, v{GA+k}, v{GA+k+1}')
    a(f'v_max_u32 {T[4]}, {T[4]}, v{GA+31}')
    a(f'v_cmp_eq_u32 vcc, -1, {T[4]}')
    a('s_cbranch_vccz L_pollA_done')
    a(f's_add_u32 {sIT}, {sIT}, 1')
    a(f's_cmp_le_u32 {sIT}, 0x40000')
    a('s_cbranch_scc1 L_slowA')
    a('L_pollA_done:')
    stamp('pollA')
    Rr = [f'v{GA+e}' for e in range(4)]
    H0, H1 = T[0], T[1]
    bf16r2(H0, H1, f'v{ACC}', f'v{ACC+1}')
    a(f'v_add_f32 {H0}, {X0}, {H0}')
    a(f'v_add_f32 {H1}, {X1}, {H1}')
    bf16r2(H0, H1, H0, H1)
    a(f'v_readfirstlane_b32 {sT2}, {H0}')
    a(f'ds_write_b64 {VOUT}, v[{H0[1:]}:{H1[1:]}] offset:{L_H}')
    zero_acc()
    a(f'v_subrev_f32 {T[2]}, {sT2}, {H0}')
    a(f'v_subrev_f32 {T[3]}, {sT2}, {H1}')
    a(f'v_mul_f32 {T[4]}, {T[2]}, {T[2]}')
    a(f'v_add_f32 {T[2]}, {T[2]}, {T[3]}')
    a(f'v_fmac_f32 {T[4]}, {T[3]}, {T[3]}')
    wave_reduce('v_add_f32', [T[2], T[4]], [sT0, sT1])
    a(f'v_mov_b32 {T[2]}, {f2u(1.0/128)}')
    a(f'v_lshlrev_b32 {T[4]}, 3, {VT}')
    a(f'v_mul_f32 {T[2]}, {sT0}, {T[2]}')
    a(f'v_mov_b32 {T[3]}, {sT1}')
    a(f'v_fma_f32 {T[3]}, -{T[2]}, {sT0}, {T[3]}')
    a(f'v_add_f32 {T[2]}, {sT2}, {T[2]}')
    a(f'ds_write_b64 {T[4]}, v[{T[2][1:]}:{T[3][1:]}] offset:{L_ST}')
    a(f'v_and_b32 {T[4]}, 3, v0')
    a(f'v_lshlrev_b32 {T[4]}, 3, {T[4]}')
    a('s_waitcnt lgkmcnt(0)')
    a('s_barrier')
    stamp('stbar')
    a(f'ds_read_b64 v[{T[2][1:]}:{T[3][1:]}], {T[4]} offset:{L_ST}')
    a('s_waitcnt lgkmcnt(0)')
    a(f'v_add_f32_dpp {T[4]}, {T[2]}, {T[2]} quad_perm:[1,0,3,2] {DPPF}')
    a(f'v_add_f32_dpp {T[4]}, {T[4]}, {T[4]} quad_perm:[2,3,0,1] {DPPF}')
    a(f'v_mul_f32 {T[4]}, {f2u(0.25)}, {T[4]}')
    a(f'v_sub_f32 {T[2]}, {T[2]}, {T[4]}')
    a(f'v_mul_f32 {T[2]}, {T[2]}, {T[2]}')
    a(f'v_fmac_f32 {T[3]}, {f2u(128.0)}, {T[2]}')
    a(f'v_add_f32_dpp {T[3]}, {T[3]}, {T[3]} quad_perm:[1,0,3,2] {DPPF}')
    a(f'v_add_f32_dpp {T[3]}, {T[3]}, {T[3]} quad_perm:[2,3,0,1] {DPPF}')
    a(f'v_mul_f32 {T[5]}, {f2u(1.0/512)}, {T[3]}')
    a(f'v_max_f32 {T[5]}, 0, {T[5]}')
    ln_finish(T[4], T[5], H0, H1, PK, T[2], T[3])
    gemv(build8, PK, [f'a[{AW1+8*u}:{AW1+8*u+7}]' for u in range(8)])
    a(f'v_lshrrev_b32 {T[0]}, 1, {VG}')
    a(f'v_lshl_add_u32 {T[0]}, {VT}, 1, {T[0]}')
    a(f'v_lshlrev_b32 {T[0]}, 8, {T[0]}')
    a(f'v_lshl_add_u32 {T[0]}, {E7}, 5, {T[0]}')
    a(f'v_and_b32 {T[1]}, 1, {VG}')
    a(f'v_lshl_add_u32 {T[0]}, {T[1]}, 4, {T[0]}')
    a(f'v_lshlrev_b32 {T[1]}, 9, {VG}')
    a(f'v_lshl_add_u32 {T[1]}, {VC}, 4, {T[1]}')
    a('s_mov_b32 exec_lo, 0x00ff00ff')
    a('s_mov_b32 exec_hi, 0xff00ff00')
    a(f'ds_write_b128 {T[0]}, {acc} offset:{L_ZP}')
    a('s_mov_b64 exec, -1')
    a('s_waitcnt lgkmcnt(0)')
    a('s_barrier')
    stamp('zbar')
    for k in range(2):
        a(f'ds_read_b128 v[{GA+4*k}:{GA+4*k+3}], {T[1]} offset:{L_ZP + k*256}')
    a(f'v_lshlrev_b32 {B1R}, 16, {B1R}')
    zero_acc()
    a('s_waitcnt lgkmcnt(0)')
    for e in (0, 2): a(f'v_pk_add_f32 v[{GA+e}:{GA+e+1}], v[{GA+e}:{GA+e+1}], v[{GA+4+e}:{GA+5+e}]')
    rs4(Rr)
    Z = T[0]
    bf16r(Z, Rr[0])
    a(f'v_add_f32 {Z}, {Z}, {B1R}')
    bf16r(Z, Z)
    KK = -2.0 * 0.7978845608028654 * LOG2E
    a(f'v_mul_f32 {T[1]}, {Z}, {Z}')
    a(f'v_mov_b32 {T[2]}, {f2u(KK)}')
    a(f'v_fmac_f32 {T[2]}, {f2u(KK * 0.044715)}, {T[1]}')
    a(f'v_mul_f32 {T[2]}, {T[2]}, {Z}')
    a(f'v_exp_f32 {T[2]}, {T[2]}')
    a(f'v_add_f32 {T[2]}, 1.0, {T[2]}')
    a(f'v_rcp_f32 {T[2]}, {T[2]}')
    a(f'v_mul_f32 {Z}, {Z}, {T[2]}')
    a(f'v_mov_b32_dpp {T[1]}, {Z} row_shl:6 {DPPF}')
    a(f'v_cvt_pk_bf16_f32 {PK}, {Z}, {T[1]}')
    gemv(build4, PK, [f'a[{AW2+8*u}:{AW2+8*u+7}]' for u in range(6)])
    a(f's_lshl_b32 {sT0}, {sH}, 6')
    a('s_mov_b32 exec_hi, 0')
    for r in range(4): a(f'v_min_u32 {T[r]}, -2, v{ACC+r}')
    a(f'buffer_store_dwordx4 v[{T[0][1:]}:{T[3][1:]}], {VPB}, {srd(SSL)}, {sT0} offen offset:2048 sc1')
    a('s_mov_b32 exec_hi, -1')
    stamp('pubB')
    a(f's_cmp_lg_u32 {sW}, 0')
    a('s_cbranch_scc1 L_fin' if stamps else 's_cbranch_scc1 L_end')
    a(f'v_lshlrev_b32 {T[4]}, 1, {C[2]}')
    a(f'ds_read_b32 {T[6]}, {T[4]} offset:{L_H}')
    a(f'v_lshlrev_b32 {B2R}, 16, {B2R}')
    a(f's_lshl_b32 {sT2}, {sB}, 10')
    a(f'v_add_u32 {C[2]}, {sT2}, {C[2]}')
    a(f's_mov_b32 {sIT}, 0')
    if opt.get('dB', 12): a(f's_sleep {opt.get("dB", 12)}')
    a('L_pollB:')
    a(f'buffer_load_dwordx4 v[{GA}:{GA+3}], {VGB}, {srd(SSL)}, {sSLOT} offen offset:2048 sc1')
    a(f'buffer_load_dwordx4 v[{GA+4}:{GA+7}], {VGB}, {srd(SSL)}, {sSLOT} offen offset:3072 sc1')
    a(f's_add_u32 {sIT}, {sIT}, 1')
    a(f's_cmp_gt_u32 {sIT}, 0x40000')
    a('s_cbranch_scc1 L_pollB_done')
    a('s_waitcnt vmcnt(0)')
    a(f'v_max3_u32 {T[4]}, v{GA}, v{GA+1}, v{GA+2}')
    a(f'v_max3_u32 {T[5]}, v{GA+3}, v{GA+4}, v{GA+5}')
    a(f'v_max3_u32 {T[4]}, {T[4]}, v{GA+6}, v{GA+7}')
    a(f'v_max_u32 {T[4]}, {T[4]}, {T[5]}')
    a(f'v_cmp_eq_u32 vcc, -1, {T[4]}')
    a('s_cbranch_vccnz L_pollB')
    a('L_pollB_done:')
    a('s_waitcnt vmcnt(0) lgkmcnt(0)')
    stamp('pollB')
    for e in (0, 2): a(f'v_pk_add_f32 v[{GA+e}:{GA+e+1}], v[{GA+e}:{GA+e+1}], v[{GA+4+e}:{GA+5+e}]')
    rs4(Rr)
    a(f'v_add_f32_dpp {Rr[0]}, {Rr[0]}, {Rr[0]} row_ror:8 {DPPF}')
    a(f'v_add_f32_dpp {Rr[0]}, {Rr[0]}, {Rr[0]} row_ror:4 {DPPF}')
    bf16r(Rr[0], Rr[0])
    a(f'v_add_f32 {Rr[0]}, {Rr[0]}, {B2R}')
    bf16r(Rr[0], Rr[0])
    a(f'v_add_f32 {Rr[0]}, {Rr[0]}, {T[6]}')
    if opt.get('perturb'): a(f'v_add_f32 {Rr[0]}, {f2u(opt["perturb"])}, {Rr[0]}')
    a(f'v_cvt_pk_bf16_f32 {Rr[0]}, {Rr[0]}, {Rr[0]}')
    a('s_mov_b32 exec_lo, 0x000f000f')
    a('s_mov_b32 exec_hi, 0x000f000f')
    a(f'global_store_short {C[2]}, {Rr[0]}, s[24:25]')
    if opt.get('diag_spin'):
        a('L_dspin:')
        a('s_memrealtime s[98:99]')
        a('s_waitcnt lgkmcnt(0)')
        a('s_sub_u32 s98, s98, s96')
        a(f's_cmp_lt_u32 s98, {opt["diag_spin"]}')
        a('s_cbranch_scc1 L_dspin')
    if stamps:
        a('s_waitcnt vmcnt(0)')
        stamp('end')
        a('L_fin:')
        a('s_waitcnt lgkmcnt(0)')
        a('s_mov_b64 exec, 1')
        a('s_add_u32 s28, s28, 0x20000000')
        a('s_addc_u32 s29, s29, 0')
        a(f's_lshl_b32 {sT0}, s2, 2')
        a(f's_add_u32 {sT0}, {sT0}, {sW}')
        a(f's_mul_i32 {sT0}, {sT0}, {nst[0]*8}')
        a(f'v_mov_b32 {T[8]}, {sT0}')
        for k in range(nst[0]):
            a(f'v_mov_b32 v{RING+2*k}, s{STB+2*k}')
            a(f'v_mov_b32 v{RING+2*k+1}, s{STB+2*k+1}')
            a(f'global_store_dwordx2 {T[8]}, v[{RING+2*k}:{RING+2*k+1}], s[28:29] offset:{8*k}')
    a('L_end:')
    a('s_endpgm')
    a('.section .rodata,"a"')
    a('.p2align 6')
    a(f'.amdhsa_kernel {NAME}_kernel')
    a('.amdhsa_next_free_vgpr 496')
    a('.amdhsa_next_free_sgpr 102')
    a('.amdhsa_accum_offset 256')
    a('.amdhsa_group_segment_fixed_size 0')
    a('.amdhsa_kernarg_size 104')
    a('.amdhsa_user_sgpr_count 2')
    a('.amdhsa_user_sgpr_kernarg_segment_ptr 1')
    a('.amdhsa_system_sgpr_workgroup_id_x 1')
    a('.amdhsa_float_denorm_mode_32 3')
    a('.end_amdhsa_kernel')
    txt = a0.finish()
    if forced: print('FORCED WAITS before', forced)
    return HEADER + txt, stnames, a0.npad, order

if __name__ == '__main__':
    name = sys.argv[1]; opt = json.loads(sys.argv[2]) if len(sys.argv) > 2 else {}
    st = sys.argv[3].split(',') if len(sys.argv) > 3 else False
    t, n, pad, order = gen(st, opt)
    open(name, 'w').write(t)
    print(name, 'stamps', n, 'pad', pad)
    if opt.get('show'): print(' '.join(f'{t}{u}' for t, u in order))
```

```python
import sys, struct, os, json
from asmlib import Asm
NAME = 'sequential_preLN__sliding_block_cached__dense_activation_gelu__decode'
def f2u(x): return '0x%08x' % struct.unpack('<I', struct.pack('<f', x))[0]
REF = 'cdna_kernels/' + NAME + '.s.ref'
HEADER = open(REF).read().split('; Override launch')[0] if os.path.exists(REF) else ''
LOG2E = 1.4426950408889634

def merge(main, extra):
    out = []; n = len(main); m = len(extra); j = 0
    for i, o in enumerate(main):
        out.append(o)
        while j < m and (i + 1) * m >= (j + 1) * n:
            out.append(extra[j]); j += 1
    return out + extra[j:]

def gen(stamps=False, opt=None):
    opt = opt or {}
    a0 = Asm()
    auto = dict(on=False, cnt=0, n=opt.get('yn', 60), lock=0)
    def a(text):
        a0(text)
        if auto['on'] and not auto['lock']:
            t = text.strip()
            if t.startswith(('s_mov_b32 exec', 's_mov_b64 exec', 's_cmp', 's_cbranch')):
                raise RuntimeError('control/exec op in auto region without lock: ' + t)
            if t.startswith(('v_', 'ds_')):
                auto['cnt'] += 3 if '_dpp' in t and 'newbcast' not in t else 1
                if auto['cnt'] >= auto['n']:
                    auto['cnt'] = 0
                    auto['on'] = False
                    try_issue()
                    auto['on'] = True
    class locked:
        def __enter__(self): auto['lock'] += 1
        def __exit__(self, *x): auto['lock'] -= 1
    R = opt.get('R', 16); RP = R // 2
    NU = opt.get('nu', 6)
    DPPF = 'row_mask:0xf bank_mask:0xf'
    SS = 2176; O_B = 1152; O_H = 1024
    BIG = 0x1000000
    RING = 64; NP = 24
    def rp(p): return RING + 8 * (p % NP)
    AQ, AW1, AW2 = 0, 128, 192
    VK, VV, VWQ, VWO, VW1, VW2, VPUB, VGA, VGB = 'v1', 'v2', 'v3', 'v4', 'v5', 'v6', 'v7', 'v8', 'v9'
    VL, VG, VC, VT = 'v10', 'v11', 'v12', 'v13'
    MA = ['v14', 'v15', 'v16', 'v17']
    MB = ['v18', 'v19', 'v20', 'v21']
    IDX, XR, B1R, B2R, CNT, VLDS, VHL, E7 = 'v22', 'v23', 'v24', 'v25', 'v26', 'v27', 'v28', 'v29'
    Q = ['v30', 'v31', 'v32', 'v33']
    X0, X1 = 'v34', 'v35'
    AI = 30; IDX2 = 'v3'; VPB = 'v1'; VHO = 'v23'; CS = 'v26'
    ACC = 36
    A0, A1 = 40, 44
    C = ['v48', 'v49', 'v50', 'v51']
    VOUT, VZW = 'v50', 'v51'
    T = [f'v{i}' for i in range(52, 64)]
    acc = f'v[{ACC}:{ACC+3}]'
    def pr(r, n=2): return f'v[{r[1:]}:{int(r[1:])+n-1}]'
    sW, sB, sH, sJ, sHO = 's3', 's30', 's31', 's14', 's15'
    SK, SV, SWQ, SWO, SW1, SW2, SSL, SB1 = 32, 36, 40, 44, 48, 52, 56, 60
    def srd(n): return f's[{n}:{n+3}]'
    sO, sQb, sT0, sT1, sT2, sT3 = 's64', 's65', 's66', 's67', 's68', 's69'
    sSLOT, sPEND, sIT, sW1b, sW2b, sOb = 's70', 's71', 's72', 's73', 's74', 's75'
    sMB0, sMB1 = 's[76:77]', 's[78:79]'
    HS = 4
    STB = 80
    nst = [0]; stnames = []
    def stamp(name):
        if stamps and name in stamps:
            stnames.append(name)
            a0(f's_memrealtime s[{STB+2*nst[0]}:{STB+2*nst[0]+1}]'); nst[0] += 1
        if stamps and (name + '_c') in stamps:
            stnames.append(name + '_c')
            a0(f's_memtime s[{STB+2*nst[0]}:{STB+2*nst[0]+1}]'); nst[0] += 1
    L_QP, L_OP, L_SM, L_ST, L_ZP, L_CP, L_H = 0, 2048, 4096, 4160, 4352, 6400, 8448
    LDS = 9472

    def wave_reduce_ops(op, xs, sd):
        ops = []
        for n in (8, 4, 2, 1):
            for x in xs: ops.append(f'{op}_dpp {x}, {x}, {x} row_ror:{n} {DPPF}')
        for x in xs: ops.append(f'{op}_dpp {x}, {x}, {x} row_bcast:15 row_mask:0xa bank_mask:0xf')
        for x in xs: ops.append(f'{op}_dpp {x}, {x}, {x} row_bcast:31 row_mask:0xc bank_mask:0xf')
        for x, s in zip(xs, sd): ops.append(f'v_readlane_b32 {s}, {x}, 63')
        return ops
    def wave_reduce(op, xs, sd):
        for o in wave_reduce_ops(op, xs, sd): a(o)
    def bf16r(dst, src):
        a(f'v_cvt_pk_bf16_f32 {dst}, {src}, {src}')
        a(f'v_and_b32 {dst}, 0xffff0000, {dst}')
    def bf16r2(d0, d1, s0, s1):
        a(f'v_cvt_pk_bf16_f32 {d1}, {s0}, {s1}')
        a(f'v_lshlrev_b32 {d0}, 16, {d1}')
        a(f'v_and_b32 {d1}, 0xffff0000, {d1}')
    kk = [0]
    def build4(src, lane):
        A = A0 if kk[0] % 2 == 0 else A1; kk[0] += 1
        for r in range(4):
            a(f'v_and_b32_dpp v{A+r}, {src}, {MA[r]} row_newbcast:{lane} {DPPF}')
        return A
    def build8(src, lane, filler=None):
        A = A0 if kk[0] % 2 == 0 else A1
        x = T[10 + kk[0] % 2]; kk[0] += 1
        a(f'v_mov_b32_dpp {x}, {src} row_newbcast:{lane} row_mask:0xf bank_mask:0x3')
        if filler:
            for _ in range(2):
                if filler: a(filler.pop(0))
        a(f'v_mov_b32_dpp {x}, {src} row_newbcast:{lane+8} row_mask:0xf bank_mask:0xc')
        for r in range(4):
            a(f'v_and_b32 v{A+r}, {x}, {MB[r]}')
        return A
    def smf(A, B, D=acc, idx=IDX):
        a(f'v_smfmac_f32_16x16x64_bf16 {D}, v[{A}:{A+3}], {B}, {idx}')
    def zero_acc(base=ACC):
        for r in range(4): a(f'v_mov_b32 v{base+r}, 0')
    def rs4(Rr, filler=None):
        def f():
            if filler: a(filler.pop(0))
        a(f'v_permlane32_swap_b32 {Rr[0]}, {Rr[2]}')
        a(f'v_permlane32_swap_b32 {Rr[1]}, {Rr[3]}')
        a(f'v_add_f32 {Rr[0]}, {Rr[0]}, {Rr[2]}')
        a(f'v_add_f32 {Rr[1]}, {Rr[1]}, {Rr[3]}')
        f(); f()
        a(f'v_permlane16_swap_b32 {Rr[0]}, {Rr[1]}')
        a(f'v_add_f32 {Rr[0]}, {Rr[0]}, {Rr[1]}')
    def publish(voff, soff, off):
        a('s_mov_b32 exec_hi, 0')
        a(f'v_cvt_pk_bf16_f32 {T[0]}, v{ACC}, v{ACC+1}')
        a(f'v_cvt_pk_bf16_f32 {T[1]}, v{ACC+2}, v{ACC+3}')
        a(f'v_min_u32 {T[0]}, -2, {T[0]}')
        a(f'v_min_u32 {T[1]}, -2, {T[1]}')
        a(f'buffer_store_dwordx2 {pr(T[0])}, {voff}, {srd(SSL)}, {soff} offen offset:{off} sc1')
        a('s_mov_b32 exec_hi, -1')

    a(f'; @launch grid=(256,1,1) block=(256,1,1) lds={LDS}')
    a('.amdgcn_target "amdgcn-amd-amdhsa--gfx950"')
    a('.text')
    a(f'.globl {NAME}_kernel')
    a('.p2align 8')
    a(f'.type {NAME}_kernel,@function')
    a(f'{NAME}_kernel:')
    fast = opt.get('fast', 0)
    a('s_load_dwordx8 s[4:11], s[0:1], 0')
    pro = opt.get('pro', 0)
    if pro == 1: a('s_load_dwordx2 s[28:29], s[0:1], 96')
    if not fast and not pro:
        a('s_load_dwordx8 s[12:19], s[0:1], 32')
        a('s_load_dwordx8 s[20:27], s[0:1], 64')
        a('s_load_dwordx2 s[28:29], s[0:1], 96')
    a('s_cmp_ge_u32 s2, 256')
    a('s_cbranch_scc1 L_end')
    stamp('start')
    if fast:
        a(f'v_lshrrev_b32 {VK}, 4, v0')
        a(f'v_and_b32 {VC}, 15, v0')
        a(f's_lshl_b32 {sT1}, s2, 20')
        a(f'v_lshlrev_b32 {VK}, 9, {VK}')
        a(f's_or_b32 {sT1}, {sT1}, 0xC0000')
        a(f'v_lshl_add_u32 {VK}, {VC}, 4, {VK}')
        a(f's_mov_b32 s{SK+2}, 0x40000')
        a(f's_mov_b32 s{SK+3}, 0x20000')
        a(f's_movk_i32 {sO}, 0x2000')
        a('s_waitcnt lgkmcnt(0)')
        stamp('ka0')
        a(f's_add_u32 s{SK}, s6, {sT1}')
        a(f's_addc_u32 s{SK+1}, s7, 0')
        for u in range(fast):
            b = RING + 8 * u
            so = '0' if u == 0 else sO
            if u > 1: a(f's_add_u32 {sO}, {sO}, 0x2000')
            a(f'buffer_load_dwordx4 v[{b}:{b+3}], {VK}, {srd(SK)}, {so} offen nt')
            a(f'buffer_load_dwordx4 v[{b+4}:{b+7}], {VK}, {srd(SK)}, {so} offen offset:256 nt')
        a('s_load_dwordx8 s[12:19], s[0:1], 32')
        a('s_load_dwordx8 s[20:27], s[0:1], 64')
        a('s_load_dwordx2 s[28:29], s[0:1], 96')
    a(f'v_lshrrev_b32 {VT}, 6, v0')
    a(f'v_and_b32 {VL}, 63, v0')
    a(f'v_readfirstlane_b32 {sW}, {VT}')
    a(f'v_lshrrev_b32 {VG}, 4, {VL}')
    a(f'v_and_b32 {VC}, 15, v0')
    a(f's_lshr_b32 {sB}, s2, 5')
    a(f's_and_b32 {sH}, s2, 31')
    a(f'v_lshlrev_b32 {VV}, 11, {VT}')
    if not fast:
        a(f'v_lshl_add_u32 {VK}, {VG}, 9, {VV}')
        a(f'v_lshl_add_u32 {VK}, {VC}, 4, {VK}')
    a(f'v_lshl_add_u32 {VV}, {VL}, 4, {VV}')
    a(f'v_lshlrev_b32 {VWQ}, 13, {VG}')
    a(f'v_lshl_add_u32 {VWQ}, {VC}, 4, {VWQ}')
    a(f's_lshl_b32 {sT0}, {sB}, 10')
    a(f'v_lshl_add_u32 {T[2]}, {VL}, 4, {sT0}')
    a(f'v_lshlrev_b32 {T[3]}, 8, {VT}')
    a(f'v_lshl_add_u32 {VGA}, {VC}, 4, {T[3]}')
    a(f'v_lshl_add_u32 {VHL}, {VG}, 2, {VGA}')
    a(f'v_add_u32 {CNT}, {sT0}, {VHL}')
    a(f'v_lshlrev_b32 {B2R}, 4, v0')
    a(f'v_cmp_gt_u32 vcc, {O_B if opt.get("mkb") else SS}, {B2R}')
    a(f'v_mov_b32 {T[0]}, {BIG:#x}')
    for r in range(4): a(f'v_mov_b32 v{A0+r}, -1')
    a(f'v_cndmask_b32 {B2R}, {T[0]}, {B2R}, vcc')
    hmap = opt.get('hmap', 0)
    sHD = 's101' if hmap else sH
    if hmap:
        a(f's_and_b32 {sHD}, {sH}, 7')
        a(f's_lshl_b32 {sHD}, {sHD}, 2')
        a(f's_lshr_b32 {sT1}, {sH}, 3')
        a(f's_add_u32 {sHD}, {sHD}, {sT1}')
        a(f's_and_b32 {sT1}, s2, 0xe0')
        a(f's_add_u32 {sT1}, {sT1}, {sHD}')
        a(f's_lshl_b32 {sT1}, {sT1}, 20')
    else:
        a(f's_lshl_b32 {sT1}, s2, 20')
    a(f's_add_u32 {sT1}, {sT1}, 0xC0000')
    a(f's_mul_i32 {sSLOT}, {sH}, {SS}')
    a(f's_mul_i32 {sT2}, {sB}, {32*SS}')
    a(f's_lshl_b32 {sQb}, {sW}, 20')
    a(f's_lshl_b32 {sT3}, {sHD}, 8')
    a(f's_add_u32 {sQb}, {sQb}, {sT3}')
    SZ = ((SK, 0x40000), (SWQ, 0x400000), (SSL, 32 * SS), (SV, 0x40000), (SWO, 0x400000), (SW1, 512 * 2752), (SW2, 1376 * 1024), (SB1, 2752))
    for n, sz in (SZ[:3] if pro else SZ):
        a(f's_mov_b32 s{n+2}, {sz:#x}')
        a(f's_mov_b32 s{n+3}, 0x20000')
    a('s_waitcnt lgkmcnt(0)')
    stamp('ka')
    if opt.get('stouch', 0) & 4:
        a(f's_lshl_b32 {sT0}, s2, 7')
        a(f's_add_u32 {sT3}, {sT0}, 0x100000')
        a(f's_load_dword s100, s[28:29], {sT3}')
        a(f's_load_dword s100, s[10:11], {sQb}')
        a(f's_load_dword s100, s[4:5], 0')
    a(f's_add_u32 s{SK}, s6, {sT1}')
    a(f's_addc_u32 s{SK+1}, s7, 0')
    a(f's_mov_b32 s{SWQ}, s10')
    a(f's_mov_b32 s{SWQ+1}, s11')
    if pro:
        a('s_load_dwordx8 s[12:19], s[0:1], 32')
        a('s_load_dwordx8 s[20:27], s[0:1], 64')
        if pro == 2: a('s_load_dwordx2 s[28:29], s[0:1], 96')
    if pro != 2:
        a(f's_add_u32 s{SSL}, s28, {sT2}')
        a(f's_addc_u32 s{SSL+1}, s29, 0')

    vm = []; issued = set()
    def issue(tag, text): a0(text); vm.append(tag); issued.add(tag)
    def waitfor(tag):
        if tag not in vm: return
        i = vm.index(tag)
        a0(f's_waitcnt vmcnt({len(vm) - 1 - i})')
        del vm[:i + 1]
    def arrived(tag): return tag in issued and tag not in vm
    ringuse = {}; ringn = [0]; slot_of = {}
    def issue_pair(op):
        t, u = op
        if t in 'KV':
            p = ringn[0]; ringn[0] += 1
            assert ringuse.get(p % NP) is None
            ringuse[p % NP] = op; slot_of[op] = rp(p)
            b = rp(p)
            a0(f's_mov_b32 {sO}, {u*8192}')
            vo, sr, o2 = (VK, SK, 256) if t == 'K' else (VV, SV, 1024)
            issue((t, u, 0), f'buffer_load_dwordx4 v[{b}:{b+3}], {vo}, {srd(sr)}, {sO} offen nt')
            issue((t, u, 1), f'buffer_load_dwordx4 v[{b+4}:{b+7}], {vo}, {srd(sr)}, {sO} offen offset:{o2} nt')
        else:
            base, vo, sr, sb, offs = {
                'Q': (AQ, VWQ, SWQ, sQb, [(2 * u + L) * 32768 for L in (0, 1)]),
                'O': (AQ, VWO, SWO, sOb, [(2 * u + L) * 4096 for L in (0, 1)]),
                'F': (AW1, VW1, SW1, sW1b, [(2 * u + L) * 11008 for L in (0, 1)]),
                'S': (AW2, VW2, SW2, sW2b, [(2 * u + L) * 2048 for L in (0, 1)]),
            }[t]
            for L in (0, 1):
                b = base + 8 * u + 4 * L
                a0(f's_add_u32 {sO}, {sb}, {offs[L]}')
                issue((t, u, L), f'buffer_load_dwordx4 a[{b}:{b+3}], {vo}, {srd(sr)}, {sO} offen nt')
    def free_slot(op):
        for k, v in ringuse.items():
            if v == op: ringuse[k] = None

    K = [('K', u) for u in range(32)]; V = [('V', u) for u in range(32)]
    Qo = [('Q', u) for u in range(16)]; Oo = [('O', u) for u in range(16)]
    Fo = [('F', u) for u in range(8)]; So = [('S', u) for u in range(NU)]
    nq = opt.get('nq', 16)
    order = merge(Qo, K[:nq]) if nq < 16 else merge(K[:nq], Qo)
    for i in range(max(fast, opt.get('kfirst', 1))):
        order.remove(K[i]); order.insert(i, K[i])
    rest = K[nq:] + V
    ns_late = opt.get('slate', 0)
    no = len(rest) - opt.get('tailv', 2)
    no_late = opt.get('olate', 0)
    Oe = Oo[:16 - no_late]; Se = So[:NU - ns_late]
    ford = opt.get('ford', 0)
    if ford == 0: ex = Fo + Se + Oe
    elif ford == 1: ex = Fo[:3] + merge(Oe[:-3], Fo[3:] + Se) + Oe[-3:]
    elif ford == 2: ex = Fo[:3] + Oe[:-3] + Fo[3:] + Se + Oe[-3:]
    if ford == 3:
        order = merge(K[:nq], merge(Qo, Fo)); order.remove(K[0]); order.insert(0, K[0])
        ex = Se + Oe
        k0 = 5
        order += rest[:k0] + merge(rest[k0:no], ex) + rest[no:]
    else:
        order += merge(rest[:no], ex) + rest[no:]
    NQ = opt.get('qfake', 16)
    if NQ < 16:
        kv = K + V
        order = [kv[0]] + Qo[:NQ] + merge(kv[1:62], Fo + Se + Oe) + kv[62:]
    late = Oo[16 - no_late:] + So[NU - ns_late:]

    P = dict(pos=0, setup=False)
    state = dict(q=0, k=0, v=0, qready=False, pready=False, cs=False, cnt=False)
    def can_issue():
        if P['pos'] >= len(order): return False
        op = order[P['pos']]
        if len(vm) + 2 > 58: return False
        if op[0] in 'VOFS' and not P['setup']: return False
        if op[0] in 'KV' and ringuse.get(ringn[0] % NP) is not None: return False
        if op[0] == 'O' and state['q'] <= op[1]: return False
        return True
    def try_issue():
        if can_issue():
            issue_pair(order[P['pos']]); P['pos'] += 1
            bn = opt.get('bn', 0)
            if bn and P['pos'] >= opt.get('bfrom', 14) and (len(order) - P['pos']) % bn == 0: a0('s_barrier')
            return True
        return False
    def marker():
        if pro == 2:
            a('s_waitcnt lgkmcnt(0)')
            a(f's_add_u32 s{SSL}, s28, {sT2}')
            a(f's_addc_u32 s{SSL+1}, s29, 0')
        if not opt.get('nomk'): issue('MK', f'buffer_store_dwordx4 v[{A0}:{A0+3}], {B2R}, {srd(SSL)}, {sSLOT} offen {opt.get("mkf", "sc1")}')
    for u in range(fast):
        op = ('K', u); p = ringn[0]; ringn[0] += 1
        ringuse[p % NP] = op; slot_of[op] = rp(p)
        for L in (0, 1): vm.append(('K', u, L)); issued.add(('K', u, L))
        P['pos'] += 1
    mkpos = opt.get('mkpos', 0)
    if opt.get('stouch', 0) & 2: a(f's_buffer_load_dword s100, {srd(SSL)}, {sSLOT}')
    xpos = opt.get('xpos', 0)
    def xloads():
        issue('X8', f'global_load_dwordx4 {pr(T[4], 4)}, {T[2]}, s[4:5]')
        issue('XR', f'global_load_dword {XR}, {CNT}, s[4:5]')
    if mkpos == 0: marker()
    if xpos == 0: xloads()
    for i in range(opt.get('n0', 6) - fast):
        try_issue()
        stamp(f'i{i}')
        if xpos == i + 1: xloads()
        if mkpos == i + 1: marker()
    if opt.get('diagk'):
        waitfor(('K', 0, 0)); stamp('k0')
    stamp('issued')
    if opt.get('diagx'):
        waitfor('XR'); stamp('xr')
        waitfor('MK'); stamp('mk')
    if pro:
        for n, sz in SZ[3:]:
            a(f's_mov_b32 s{n+2}, {sz:#x}')
            a(f's_mov_b32 s{n+3}, 0x20000')
        a('s_waitcnt lgkmcnt(0)')
    a(f's_add_u32 s{SV}, s8, {sT1}')
    a(f's_addc_u32 s{SV+1}, s9, 0')
    for n, p in ((SWO, 12), (SW1, 16), (SW2, 20), (SB1, 18)):
        a(f's_mov_b32 s{n}, s{p}')
        a(f's_mov_b32 s{n+1}, s{p+1}')
    a('s_mov_b32 s76, 0xaaaaaaaa'); a('s_mov_b32 s77, 0xaaaaaaaa')
    a('s_mov_b32 s78, 0xcccccccc'); a('s_mov_b32 s79, 0xcccccccc')
    a(f's_lshl_b32 {sOb}, {sHD}, 17')
    a(f's_and_b32 {sJ}, {sH}, 7')
    a(f's_lshl_b32 {sJ}, {sJ}, 2')
    a(f's_lshr_b32 {sT0}, {sH}, 3')
    a(f's_add_u32 {sJ}, {sJ}, {sT0}')
    a(f's_cmp_eq_u32 {sW}, 0')
    a(f's_cselect_b32 {sHO}, {sJ}, {BIG:#x}')
    if opt.get('prio'):
        tab = 0
        for rank, g in enumerate(opt['prio']): tab |= rank << (4 * g)
        a(f's_and_b32 {sJ}, {sJ}, 0x1c')
        a(f's_lshr_b32 {sJ}, {tab:#x}, {sJ}')
        a(f's_and_b32 {sJ}, {sJ}, 7')
        a(f's_lshl_b32 {sJ}, {sJ}, 2')
        a(f's_add_u32 {sJ}, {sJ}, {sT0}')
    a(f's_mul_i32 {sW1b}, {sJ}, {16*NU}')
    a(f's_mul_i32 {sW2b}, {sJ}, {8*NU*1024}')
    NH = opt.get('nh', 32)
    a(f's_and_b32 {sT0}, {sH}, {NH-1}')
    a(f's_mul_i32 {sT0}, {sT0}, {SS}')
    a(f's_add_u32 s12, s{SSL}, {sT0}')
    a(f's_addc_u32 s13, s{SSL+1}, 0')
    if opt.get('stouch', 0) & 1:
        a(f's_buffer_load_dword s100, {srd(SV)}, 0')
        a(f's_buffer_load_dword s100, {srd(SWO)}, {sOb}')
        a(f's_buffer_load_dword s100, {srd(SW2)}, {sW2b}')
        a(f's_buffer_load_dword s100, {srd(SW1)}, {sW1b}')
        a(f's_add_u32 {sT0}, {sW1b}, {511*2752}')
        a(f's_buffer_load_dword s100, {srd(SW1)}, {sT0}')
        a(f's_buffer_load_dword s100, {srd(SB1)}, 0')
        a(f's_load_dword s100, s[22:23], 0')
        a(f's_load_dword s100, s[24:25], 0')
        a(f's_load_dword s100, s[26:27], 0')
    HALF, GH, GL = T[2], T[0], T[1]
    a(f'v_lshrrev_b32 {GH}, 1, {VG}')
    a(f'v_and_b32 {GL}, 1, {VG}')
    a(f'v_and_b32 {E7}, 7, v0')
    a(f'v_bfe_u32 {HALF}, v0, 3, 1')
    a(f'v_and_b32 {IDX}, 3, v0')
    a(f'v_mul_u32_u24 {IDX}, 0x5555, {IDX}')
    a(f'v_mov_b32 {T[8]}, 0xffff')
    a(f'v_mov_b32 {T[9]}, 0xffff0000')
    a(f'v_lshrrev_b32 {T[3]}, 2, {VC}')
    a(f'v_cmp_eq_u32 vcc, 0, {T[3]}')
    a(f'v_cndmask_b32 {MA[0]}, 0, {T[8]}, vcc'); a(f'v_cndmask_b32 {MA[2]}, 0, {T[9]}, vcc')
    a(f'v_cmp_eq_u32 vcc, 1, {T[3]}')
    a(f'v_cndmask_b32 {MA[1]}, 0, {T[8]}, vcc'); a(f'v_cndmask_b32 {MA[3]}, 0, {T[9]}, vcc')
    a(f'v_cmp_gt_u32 vcc, 4, {E7}')
    a(f'v_cndmask_b32 {MB[0]}, 0, {T[8]}, vcc'); a(f'v_cndmask_b32 {MB[2]}, 0, {T[9]}, vcc')
    a(f'v_xor_b32 {MB[1]}, {T[8]}, {MB[0]}'); a(f'v_xor_b32 {MB[3]}, {T[9]}, {MB[2]}')
    a(f'v_lshl_add_u32 {VWO}, {VG}, 10, {VGA}')
    a(f'v_mul_u32_u24 {VW2}, {4*NU}, {GL}')
    a(f'v_add_u32 {VW2}, {VW2}, {GH}')
    a(f'v_lshl_add_u32 {VW2}, {VW2}, 10, {VGA}')
    a(f'v_lshl_add_u32 {VW1}, {HALF}, 6, {VG}')
    a(f'v_lshl_add_u32 {VW1}, {VT}, 7, {VW1}')
    a(f'v_mul_u32_u24 {VW1}, 2752, {VW1}')
    a(f'v_lshl_add_u32 {VW1}, {E7}, 4, {VW1}')
    a(f's_mul_i32 {sT0}, {sJ}, {NU}')
    a(f's_sub_i32 {sT0}, 172, {sT0}')
    a(f's_min_i32 {sT0}, {sT0}, {NU}')
    a(f'v_cmp_gt_i32 vcc, {sT0}, {E7}')
    a(f'v_mov_b32 {T[3]}, 0x7fff0000')
    a(f'v_cndmask_b32 {VW1}, {T[3]}, {VW1}, vcc')
    a(f'v_lshl_add_u32 {VPUB}, {VG}, 3, {VGA}')
    a(f'v_mul_u32_u24 {T[3]}, {8*SS}, {VG}')
    a(f'v_add_u32 {VGA}, {VGA}, {T[3]}')
    a(f'v_lshlrev_b32 {VGB}, 4, {VL}')
    a(f'v_lshlrev_b32 {VLDS}, 1, {VPUB}')
    zero_acc()
    P['setup'] = True
    while P['pos'] < opt.get('n1', 12):
        try_issue()
        if mkpos == P['pos']: marker()
    stamp('n1')
    waitfor('XR')
    stamp('xr2')
    auto['on'] = True
    X = [C[0], C[1], C[2], C[3], T[8], T[9], T[10], T[11]]
    for k in range(4):
        a(f'v_lshlrev_b32 {X[2*k]}, 16, {T[4+k]}')
        a(f'v_and_b32 {X[2*k+1]}, 0xffff0000, {T[4+k]}')
    a(f'v_lshlrev_b32 {X0}, 16, {XR}')
    a(f'v_and_b32 {X1}, 0xffff0000, {XR}')
    a(f'v_add_f32 {T[4]}, {X[0]}, {X[1]}'); a(f'v_add_f32 {T[5]}, {X[2]}, {X[3]}')
    a(f'v_add_f32 {T[6]}, {X[4]}, {X[5]}'); a(f'v_add_f32 {T[7]}, {X[6]}, {X[7]}')
    a(f'v_add_f32 {T[4]}, {T[4]}, {T[5]}'); a(f'v_add_f32 {T[6]}, {T[6]}, {T[7]}')
    a(f'v_add_f32 {T[4]}, {T[4]}, {T[6]}')
    wave_reduce('v_add_f32', [T[4]], [sT0])
    a(f'v_mov_b32 {T[5]}, {f2u(1.0/512)}')
    a(f'v_mul_f32 {T[5]}, {sT0}, {T[5]}')
    for k in range(8): a(f'v_sub_f32 {X[k]}, {X[k]}, {T[5]}')
    a(f'v_mul_f32 {T[4]}, {X[0]}, {X[0]}')
    for k in range(1, 8): a(f'v_fmac_f32 {T[4]}, {X[k]}, {X[k]}')
    wave_reduce('v_add_f32', [T[4]], [sT0])
    a(f'v_mov_b32 {T[6]}, {f2u(1.0/512)}')
    a(f'v_mul_f32 {T[6]}, {sT0}, {T[6]}')
    XN = XR
    mean, var, t0, t1 = T[5], T[6], T[8], T[9]
    bf16r2(mean, var, mean, var)
    a(f'v_add_f32 {var}, {f2u(1e-5)}, {var}')
    a(f'v_sub_f32 {t0}, {X0}, {mean}')
    bf16r(var, var)
    a(f'v_sqrt_f32 {var}, {var}')
    a(f'v_sub_f32 {t1}, {X1}, {mean}')
    bf16r(var, var)
    a(f'v_rcp_f32 {var}, {var}')
    bf16r2(t0, t1, t0, t1)
    a(f'v_mul_f32 {t0}, {t0}, {var}')
    a(f'v_mul_f32 {t1}, {t1}, {var}')
    a(f'v_cvt_pk_bf16_f32 {XN}, {t0}, {t1}')

    U = [[T[0], T[1], T[2], T[3]], [T[4], T[5], T[6], T[7]]]
    TMP = [[T[8], T[9]], [T[10], T[11]]]
    lane_of = {}
    def do_q(u):
        A = build4(XN, u)
        smf(A, f'a[{AQ+8*u}:{AQ+8*u+7}]')
    def q_finish():
        try_issue()
        with locked():
            a('s_mov_b32 exec_hi, 0')
            a(f'ds_write_b128 {VLDS}, {acc} offset:{L_QP}')
            a('s_mov_b32 exec_hi, -1')
        a(f'v_lshlrev_b32 {CNT}, 5, {VC}')
        a('s_waitcnt lgkmcnt(0)')
        a('s_barrier')
        stamp('qbar')
        with locked():
            a(f's_cmp_lg_u32 {sW}, 0')
            a('s_cbranch_scc1 L_nosig')
            a(f's_lshl_b32 {sT0}, {sB}, 5')
            a(f'v_mov_b32 {T[0]}, {sT0}')
            a(f'v_mov_b32 {T[1]}, 1')
            a('s_mov_b64 exec, 1')
            a(f'global_atomic_add {T[0]}, {T[1]}, s[26:27] sc1')
            a('s_mov_b64 exec, -1')
            a('L_nosig:')
        try_issue()
        B0 = 40; d3 = int(T[4][1:])
        for half in range(2):
            for p in range(4):
                d = B0 + 4 * p if p < 3 else d3
                a(f'ds_read_b128 v[{d}:{d+3}], {CNT} offset:{L_QP + p*512 + half*16}')
            a('s_waitcnt lgkmcnt(0)')
            for e in range(4):
                a(f'v_add_f32 v{B0+e}, v{B0+e}, v{B0+4+e}')
                a(f'v_add_f32 v{B0+8+e}, v{B0+8+e}, v{d3+e}')
            for e in range(4): a(f'v_add_f32 v{B0+e}, v{B0+e}, v{B0+8+e}')
            a(f'v_cvt_pk_bf16_f32 {Q[2*half]}, v{B0}, v{B0+1}')
            a(f'v_cvt_pk_bf16_f32 {Q[2*half+1]}, v{B0+2}, v{B0+3}')
        zero_acc()
    def do_k(u):
        b = slot_of[('K', u)]
        i = u % 16
        S = [[U[ch][i // 4], TMP[ch][0], TMP[ch][1], TMP[ch][0]][i % 4] for ch in range(2)]
        for r in range(4):
            for ch in range(2):
                a(f'v_dot2_f32_bf16 {S[ch]}, v{b+4*ch+r}, {Q[r]}, {"0" if r == 0 else S[ch]}')
        free_slot(('K', u))
        if i % 2 == 1:
            for ch in range(2):
                sa = U[ch][i // 4] if i % 4 == 1 else TMP[ch][1]
                a(f'v_add_f32_dpp {sa}, {sa}, {sa} row_ror:8 row_mask:0xf bank_mask:0x3')
            for ch in range(2):
                sa = U[ch][i // 4] if i % 4 == 1 else TMP[ch][1]
                sb = TMP[ch][0]
                a(f'v_add_f32_dpp {sa}, {sb}, {sb} row_ror:8 row_mask:0xf bank_mask:0xc')
        if i % 4 == 3:
            for ch in range(2):
                ta = U[ch][i // 4]
                a(f'v_add_f32_dpp {ta}, {ta}, {ta} row_half_mirror row_mask:0xf bank_mask:0x5')
            for ch in range(2):
                ta, tb = U[ch][i // 4], TMP[ch][1]
                a(f'v_add_f32_dpp {ta}, {tb}, {tb} row_half_mirror row_mask:0xf bank_mask:0xa')
        lane_of[u] = ((i & 1) << 3) | (((i >> 1) & 1) << 2) | ((i >> 2) & 1) | (((i >> 3) & 1) << 1)
        if i == 15:
            for ch in range(2):
                for x in U[ch]: a(f'v_add_f32_dpp {x}, {x}, {x} quad_perm:[1,0,3,2] {DPPF}')
            for ch in range(2):
                a(f'v_cndmask_b32 {U[ch][0]}, {U[ch][0]}, {U[ch][1]}, {sMB0}')
                a(f'v_cndmask_b32 {U[ch][2]}, {U[ch][2]}, {U[ch][3]}, {sMB0}')
            for ch in range(2):
                for x in (U[ch][0], U[ch][2]): a(f'v_add_f32_dpp {x}, {x}, {x} quad_perm:[2,3,0,1] {DPPF}')
            for ch in range(2):
                a(f'v_cndmask_b32 {C[2*(u//16)+ch]}, {U[ch][0]}, {U[ch][2]}, {sMB1}')
    def softmax():
        stamp('qkdone')
        for k in (0, 2): bf16r2(C[k], C[k+1], C[k], C[k+1])
        for k in range(4): a(f'v_mul_f32 {C[k]}, {f2u(128 ** -0.5)}, {C[k]}')
        for k in (0, 2): bf16r2(C[k], C[k+1], C[k], C[k+1])
        a(f'v_max_f32 {T[0]}, {C[0]}, {C[1]}')
        a(f'v_max3_f32 {T[0]}, {T[0]}, {C[2]}, {C[3]}')
        wave_reduce('v_max_f32', [T[0]], [sT0])
        for k in range(4): a(f'v_subrev_f32 {T[k]}, {sT0}, {C[k]}')
        for k in range(4): a(f'v_mul_f32 {T[k]}, {f2u(LOG2E)}, {T[k]}')
        for k in range(4): a(f'v_exp_f32 {T[k]}, {T[k]}')
        a(f'v_add_f32 {T[0]}, {T[0]}, {T[1]}')
        a(f'v_add_f32 {T[2]}, {T[2]}, {T[3]}')
        a(f'v_add_f32 {T[0]}, {T[0]}, {T[2]}')
        wave_reduce('v_add_f32', [T[0]], [sT1])
        a(f'v_mov_b32 {T[0]}, {sT0}')
        a(f'v_mov_b32 {T[1]}, {sT1}')
        a(f'v_lshlrev_b32 {T[2]}, 3, {VT}')
        a(f'ds_write_b64 {T[2]}, {pr(T[0])} offset:{L_SM}')
        a(f'v_and_b32 {T[2]}, 3, v0')
        a(f'v_lshlrev_b32 {T[2]}, 3, {T[2]}')
        a('s_waitcnt lgkmcnt(0)')
        a('s_barrier')
        a(f'ds_read_b64 {pr(T[0])}, {T[2]} offset:{L_SM}')
        try_issue()
        a('s_waitcnt lgkmcnt(0)')
        a(f'v_max_f32_dpp {T[2]}, {T[0]}, {T[0]} quad_perm:[1,0,3,2] {DPPF}')
        a(f'v_max_f32_dpp {T[2]}, {T[2]}, {T[2]} quad_perm:[2,3,0,1] {DPPF}')
        a(f'v_sub_f32 {T[0]}, {T[0]}, {T[2]}')
        for k in range(4): a(f'v_sub_f32 {C[k]}, {C[k]}, {T[2]}')
        a(f'v_mul_f32 {T[0]}, {f2u(LOG2E)}, {T[0]}')
        for k in range(4): a(f'v_mul_f32 {C[k]}, {f2u(LOG2E)}, {C[k]}')
        a(f'v_exp_f32 {T[0]}, {T[0]}')
        for k in range(4): a(f'v_exp_f32 {C[k]}, {C[k]}')
        a(f'v_mul_f32 {T[1]}, {T[1]}, {T[0]}')
        a(f'v_add_f32_dpp {T[1]}, {T[1]}, {T[1]} quad_perm:[1,0,3,2] {DPPF}')
        a(f'v_add_f32_dpp {T[1]}, {T[1]}, {T[1]} quad_perm:[2,3,0,1] {DPPF}')
        a(f'v_rcp_f32 {T[1]}, {T[1]}')
        for k in range(4): a(f'v_mul_f32 {C[k]}, {C[k]}, {T[1]}')
        a(f'v_cvt_pk_bf16_f32 {C[0]}, {C[0]}, {C[1]}')
        a(f'v_cvt_pk_bf16_f32 {C[1]}, {C[2]}, {C[3]}')
        stamp('smdone')
        a(f's_lshl_b32 {sT0}, {sB}, 5')
        a(f'v_mov_b32 {T[0]}, {sT0}')
        issue('CNT', f'global_load_dword {CNT}, {T[0]}, s[26:27] sc1')
        a(f'v_lshl_add_u32 {T[1]}, {VC}, 2, {VG}')
        a(f's_mul_i32 {sT0}, {sJ}, {8*NU}')
        a(f'v_add_lshl_u32 {T[2]}, {T[1]}, {sT0}, 1')
        issue('B1', f'buffer_load_ushort {B1R}, {T[2]}, {srd(SB1)}, 0 offen')
        a(f'v_and_b32 {T[5]}, 1, v0')
        a(f'v_lshlrev_b32 {T[1]}, 2, {VG}')
        a(f'v_lshl_add_u32 {T[1]}, {T[5]}, 4, {T[1]}')
        a(f's_lshl_b32 {sT0}, {sH}, 5')
        a(f'v_add_u32 {VOUT}, {sT0}, {T[1]}')
        issue('B2', f'global_load_dword {B2R}, {VOUT}, s[22:23]')
        a(f'v_cmp_gt_u32 vcc, 8, {VC}')
        a(f'v_mov_b32 {T[3]}, 0x3f80')
        a(f'v_bfe_u32 {T[4]}, v0, 2, 1')
        a(f'v_cndmask_b32 v{AI}, 0, {T[3]}, vcc')
        a(f'v_xor_b32 v{AI+1}, {T[3]}, v{AI}')
        a(f'v_mov_b32 v{AI+2}, v{AI}')
        a(f'v_mov_b32 v{AI+3}, v{AI+1}')
        a(f'v_lshl_add_u32 {IDX2}, {T[4]}, 1, {T[5]}')
        a(f'v_mul_u32_u24 {IDX2}, 0x5555, {IDX2}')
        a(f'v_lshrrev_b32 {VPB}, 1, {VC}')
        a(f'v_lshl_add_u32 {VPB}, {VT}, 3, {VPB}')
        a(f'v_mul_u32_u24 {VPB}, {SS}, {VPB}')
        a(f'v_lshl_add_u32 {VPB}, {T[5]}, 4, {VPB}')
        a(f'v_lshl_add_u32 {VPB}, {VG}, 3, {VPB}')
        a(f'v_and_b32 {VHO}, 31, v0')
        a(f'v_mul_u32_u24 {VHO}, {SS}, {VHO}')
        a(f'v_lshrrev_b32 {VZW}, 1, {VG}')
        a(f'v_lshl_add_u32 {VZW}, {VT}, 1, {VZW}')
        a(f'v_lshlrev_b32 {VZW}, 8, {VZW}')
        a(f'v_lshl_add_u32 {VZW}, {E7}, 5, {VZW}')
        a(f'v_and_b32 {T[1]}, 1, {VG}')
        a(f'v_lshl_add_u32 {VZW}, {T[1]}, 4, {VZW}')
    def colsum():
        D = int(T[4][1:])
        a(f'v_mov_b32 {T[0]}, 0x3f803f80')
        zero_acc(D)
        A = A0 if kk[0] % 2 == 0 else A1; kk[0] += 1
        for r in range(4): a(f'v_and_b32 v{A+r}, {T[0]}, {MB[r]}')
        for u in range(8): smf(A, f'a[{AW1+8*u}:{AW1+8*u+7}]', f'v[{D}:{D+3}]')
        with locked():
            a('s_mov_b32 exec_lo, 0x00ff00ff')
            a('s_mov_b32 exec_hi, 0xff00ff00')
            a(f'ds_write_b128 {VZW}, v[{D}:{D+3}] offset:{L_CP}')
            a('s_mov_b64 exec, -1')
    def do_v(u, wait=False):
        b = slot_of[('V', u)]
        A = build4(C[u // 16], lane_of[u])
        if wait: waitfor(('V', u, 1))
        smf(A, f'v[{b}:{b+7}]')
        free_slot(('V', u))
    def cnt_check():
        a(f'v_readfirstlane_b32 {sT0}, {CNT}')
        a(f's_cmp_ge_u32 {sT0}, 32')
        a('s_cbranch_scc1 L_cntok')
        a(f's_mov_b32 {sIT}, 0')
        a(f's_lshl_b32 {sT0}, {sB}, 5')
        a(f'v_mov_b32 {T[0]}, {sT0}')
        a('L_cntspin:')
        a(f'global_load_dword {CNT}, {T[0]}, s[26:27] sc1')
        a('s_waitcnt vmcnt(0)')
        a(f'v_readfirstlane_b32 {sT0}, {CNT}')
        a(f's_add_u32 {sIT}, {sIT}, 1')
        a(f's_cmp_gt_u32 {sIT}, 0x40000')
        a('s_cbranch_scc1 L_cntok')
        a('s_sleep 4')
        a(f's_cmp_lt_u32 {sT0}, 32')
        a('s_cbranch_scc1 L_cntspin')
        a('L_cntok:')
    burst = opt.get('burst', 3)
    forced = []
    pstamps = list(range(20, 110, 10))
    def consume():
        while state['q'] < 16 and arrived(('Q', min(state['q'], NQ - 1), 1)) and (NQ == 16 or P['pos'] >= 22):
            do_q(state['q']); state['q'] += 1
            if state['q'] == 16: q_finish(); state['qready'] = True; return
        n = 0
        while state['qready'] and state['k'] < 32 and arrived(('K', state['k'], 1)) and n < burst:
            do_k(state['k']); state['k'] += 1; n += 1
            if state['k'] == 32: softmax(); state['pready'] = True; return
        while state['pready'] and state['v'] < 32 and arrived(('V', state['v'], 1)) and n < burst:
            do_v(state['v']); state['v'] += 1; n += 1
        if not state['cnt'] and arrived('CNT'):
            with locked(): cnt_check()
            state['cnt'] = True
        elif state['cnt'] and not state['cs'] and arrived(('F', 7, 1)):
            colsum(); state['cs'] = True
    while P['pos'] < len(order):
        ok = try_issue()
        for pp in list(pstamps):
            if P['pos'] >= pp: stamp(f'p{pp}'); pstamps.remove(pp)
        auto['cnt'] = 0
        lag = P['pos'] - 1 - RP
        if not ok:
            nxt = [t for t in vm if isinstance(t, tuple) and t[2] == 1]
            before = (state['q'], state['k'], state['v'])
            consume()
            if before == (state['q'], state['k'], state['v']):
                forced.append(order[P['pos']])
                waitfor(nxt[0]); consume()
            continue
        if lag >= 0:
            t, u = order[lag]
            waitfor((t, u, 1))
        consume()
    auto['on'] = False
    assert state['pready'] and state['cnt'] and state['cs'], state
    stamp('allissued')
    free = [p for p in range(NP) if ringuse.get(p) is None]
    GA = None
    for s0 in range(NP - 5):
        if all(p in free for p in range(s0, s0 + 6)): GA = RING + 8 * s0; break
    assert GA is not None, (free, state)
    GB = GA + 32
    GZ = GA + 40
    def hint_load():
        a(f's_load_dwordx8 s[{HS}:{HS+7}], s[12:13], {O_H} glc')
    def hint_store():
        if opt.get('nohint'): return
        a('s_mov_b32 exec_hi, 0' if NH == 32 else f's_mov_b64 exec, {(1 << NH) - 1:#x}')
        issue('HS', f'buffer_store_byte {T[9]}, {VHO}, {srd(SSL)}, {sHO} offen offset:{O_H} sc1')
        a('s_mov_b64 exec, -1')
    hpos = opt.get('hpos', 4)
    a(f's_mov_b32 {sPEND}, 0xff')
    a(f's_mov_b32 {sIT}, 0')
    a(f'v_lshlrev_b32 {T[8]}, 3, {VG}')
    a(f'v_lshl_add_u32 {T[8]}, {VC}, 5, {T[8]}')
    a(f'v_mov_b32 {T[9]}, 0')
    VZR = VV
    a(f'v_lshlrev_b32 {VZR}, 9, {VG}')
    a(f'v_lshl_add_u32 {VZR}, {VC}, 4, {VZR}')
    zero_acc(GB + 4)
    a(f'v_lshlrev_b32 {B1R}, 16, {B1R}')
    if opt.get('mkb'):
        a(f'v_lshlrev_b32 {T[0]}, 2, v0')
        a(f'v_mov_b32 {T[1]}, -1')
        issue('MKB', f'buffer_store_dword {T[1]}, {T[0]}, {srd(SSL)}, {sSLOT} offen offset:{O_B} sc1')
    LW = opt.get('lw', 8)
    while state['v'] < 32:
        while late and ('V', 31, 1) in vm:
            if len(vm) + 2 <= LW + 2 - 2 + 0 or len(vm) <= LW - 2:
                issue_pair(late.pop(0))
            else:
                break
        nxt = vm[1] if len(vm) > 1 else vm[0]
        if nxt[0] != 'V' and arrived(('V', state['v'], 1)) is False:
            waitfor(nxt); continue
        do_v(state['v'], wait=True); state['v'] += 1
    stamp('pvdone')
    if opt.get('stopV'): a('s_branch L_fin')
    a('s_mov_b32 exec_hi, 0')
    a(f'ds_write_b128 {VLDS}, {acc} offset:{L_OP}')
    a('s_mov_b32 exec_hi, -1')
    lmode = opt.get('lmode', 0)
    if lmode == 0:
        while late: issue_pair(late.pop(0))
    a('s_waitcnt lgkmcnt(0)')
    a('s_barrier')
    stamp('obar')
    for p in range(4):
        a(f'ds_read_b64 {pr(T[2*p])}, {T[8]} offset:{L_OP + p*512}')
    if lmode == 1:
        while late: issue_pair(late.pop(0))
    if hpos == 0: hint_store()
    zero_acc()
    a('s_waitcnt lgkmcnt(0)')
    hint_load()
    a(f'v_pk_add_f32 {pr(T[0])}, {pr(T[0])}, {pr(T[2])}')
    a(f'v_pk_add_f32 {pr(T[4])}, {pr(T[4])}, {pr(T[6])}')
    a(f'v_pk_add_f32 {pr(T[0])}, {pr(T[0])}, {pr(T[4])}')
    PK = T[8]
    a(f'v_cvt_pk_bf16_f32 {PK}, {T[0]}, {T[1]}')
    A = build4(PK, 0)
    for k in range(16):
        An = build4(PK, k + 1) if k + 1 < 16 else None
        waitfor(('O', k, 1))
        smf(A, f'a[{AQ+8*k}:{AQ+8*k+7}]'); A = An
        if hpos > 0 and k + 1 == hpos: hint_store()
    waitfor('MKB')
    vm.clear()
    if not opt.get('nopub'): publish(VPUB, sSLOT, 0)
    while late: issue_pair(late.pop(0))
    vm.clear()
    stamp('pubA')
    if opt.get('stopA'): a('s_branch L_fin')
    def ld(u):
        b = GA + 4 * u
        a(f's_mov_b32 {sO}, {u*SS}')
        a(f'buffer_load_dwordx4 v[{b}:{b+3}], {VGA}, {srd(SSL)}, {sO} offen sc1')
    first = True
    a('L_hintA:')
    a('s_waitcnt lgkmcnt(0)')
    for hi in range(2):
        a(f's_and_b32 {sT1}, {sPEND}, {0xf << (4*hi)}')
        a(f's_cbranch_scc0 L_ha_h{hi}')
        for u in range(4 * hi, 4 * hi + 4):
            a(f's_bitcmp0_b32 {sPEND}, {u}')
            a(f's_cselect_b32 {sT0}, 1, s{HS+u}')
            a(f's_cmp_lg_u32 {sT0}, 0')
            a(f's_cbranch_scc1 L_ha{u}')
            a(f's_bitset0_b32 {sPEND}, {u}')
            ld(u)
            a(f'L_ha{u}:')
        a(f'L_ha_h{hi}:')
    a(f's_cmp_eq_u32 {sPEND}, 0')
    a('s_cbranch_scc1 L_preA')
    if opt.get('sleepA'): a(f's_sleep {opt["sleepA"]}')
    hint_load()
    a(f's_add_u32 {sIT}, {sIT}, 1')
    a(f's_cmp_le_u32 {sIT}, 0x2000')
    a('s_cbranch_scc1 L_hintA')
    a('s_waitcnt lgkmcnt(0)')
    a('L_slowA:')
    for u in range(8): ld(u)
    a('L_preA:')
    Rz = [f'v{GZ+e}' for e in range(4)]
    for k in range(2):
        a(f'ds_read_b128 v[{GZ+4*k}:{GZ+4*k+3}], {VZR} offset:{L_CP + k*256}')
    zero_acc()
    a('s_waitcnt lgkmcnt(0)')
    for e in (0, 2): a(f'v_pk_add_f32 v[{GZ+e}:{GZ+e+1}], v[{GZ+e}:{GZ+e+1}], v[{GZ+4+e}:{GZ+5+e}]')
    rs4(Rz)
    a(f'v_mov_b32 {CS}, {Rz[0]}')
    a(f'v_mov_b32 {T[7]}, 0x3f803f80')
    a('s_waitcnt vmcnt(0)')
    for p in range(4):
        smf(AI, f'v[{GA+8*p}:{GA+8*p+7}]', acc, IDX2)
    a(f'v_cmp_u_f32 vcc, v{ACC}, v{ACC+1}')
    a(f'v_pk_add_f32 {pr(T[0])}, {pr(X0)}, v[{ACC}:{ACC+1}]')
    a('s_cbranch_vccz L_pollA_done')
    a(f'v_max3_u32 {T[4]}, v{GA}, v{GA+1}, v{GA+2}')
    for k in range(3, 31, 2):
        a(f'v_max3_u32 {T[4]}, {T[4]}, v{GA+k}, v{GA+k+1}')
    a(f'v_max_u32 {T[4]}, {T[4]}, v{GA+31}')
    a(f'v_cmp_eq_u32 vcc, -1, {T[4]}')
    a('s_cbranch_vccz L_pollA_done')
    a(f's_add_u32 {sIT}, {sIT}, 1')
    a(f's_cmp_le_u32 {sIT}, 0x40000')
    a('s_cbranch_scc1 L_slowA')
    a('L_pollA_done:')
    stamp('pollA')
    a(f'v_cvt_pk_bf16_f32 {PK}, {T[0]}, {T[1]}')
    zero_acc()
    S1, S2 = T[2], T[3]
    fill = [f'v_dot2_f32_bf16 {S1}, {PK}, {T[7]}, 0', f'v_dot2_f32_bf16 {S2}, {PK}, {PK}, 0']
    fill += wave_reduce_ops('v_add_f32', [S1, S2], [])
    fill += [f'ds_write_b32 {VHL}, {PK} offset:{L_H}', f'v_lshlrev_b32 {T[4]}, 3, {VT}']
    A = build8(PK, 0, fill)
    for k in range(8):
        An = build8(PK, k + 1, fill) if k + 1 < 8 else None
        smf(A, f'a[{AW1+8*k}:{AW1+8*k+7}]'); A = An
    assert not fill, fill
    a('s_mov_b32 exec_lo, 0')
    a('s_mov_b32 exec_hi, 0x80000000')
    a(f'ds_write_b64 {T[4]}, {pr(S1)} offset:{L_ST}')
    a('s_mov_b32 exec_lo, 0x00ff00ff')
    a('s_mov_b32 exec_hi, 0xff00ff00')
    a(f'ds_write_b128 {VZW}, {acc} offset:{L_ZP}')
    a('s_mov_b64 exec, -1')
    a('s_waitcnt lgkmcnt(0)')
    a('s_barrier')
    stamp('zbar')
    a(f'ds_read_b128 {pr(T[0], 4)}, {T[9]} offset:{L_ST}')
    a(f'ds_read_b128 {pr(T[4], 4)}, {T[9]} offset:{L_ST + 16}')
    for k in range(2):
        a(f'ds_read_b128 v[{GZ+4*k}:{GZ+4*k+3}], {VZR} offset:{L_ZP + k*256}')
    zero_acc()
    a('s_waitcnt lgkmcnt(0)' if stamps else 's_waitcnt lgkmcnt(2)')
    a(f'v_pk_add_f32 {pr(T[0])}, {pr(T[0])}, {pr(T[2])}')
    a(f'v_pk_add_f32 {pr(T[4])}, {pr(T[4])}, {pr(T[6])}')
    a(f'v_pk_add_f32 {pr(T[0])}, {pr(T[0])}, {pr(T[4])}')
    a(f'v_mul_f32 {T[0]}, {f2u(1.0/512)}, {T[0]}')
    a(f'v_mov_b32 {T[2]}, {f2u(1e-5)}')
    a(f'v_mul_f32 {T[1]}, {f2u(1.0/512)}, {T[1]}')
    a('s_waitcnt lgkmcnt(0)')
    for e in (0, 2): a(f'v_pk_add_f32 v[{GZ+e}:{GZ+e+1}], v[{GZ+e}:{GZ+e+1}], v[{GZ+4+e}:{GZ+5+e}]')
    a(f'v_fma_f32 {T[1]}, -{T[0]}, {T[0]}, {T[1]}')
    a(f'v_max_f32 {T[1]}, 0, {T[1]}')
    rs4(Rz, [f'v_add_f32 {T[1]}, {T[1]}, {T[2]}', f'v_rsq_f32 {T[1]}, {T[1]}'])
    Z = T[3]
    KK = -2.0 * 0.7978845608028654 * LOG2E
    a(f'v_fma_f32 {Z}, -{T[0]}, {CS}, {Rz[0]}')
    a(f'v_mov_b32 {T[2]}, {f2u(KK)}')
    a(f'v_fma_f32 {Z}, {Z}, {T[1]}, {B1R}')
    a(f'v_mul_f32 {T[1]}, {Z}, {Z}')
    a(f'v_fmac_f32 {T[2]}, {f2u(KK * 0.044715)}, {T[1]}')
    a(f'v_mul_f32 {T[2]}, {T[2]}, {Z}')
    a(f'v_exp_f32 {T[2]}, {T[2]}')
    a(f's_lshl_b32 {sT0}, {sH}, 5')
    a(f'v_add_f32 {T[2]}, 1.0, {T[2]}')
    a(f'v_rcp_f32 {T[2]}, {T[2]}')
    a(f'v_mul_f32 {Z}, {Z}, {T[2]}')
    a(f'v_mov_b32_dpp {T[1]}, {Z} row_shl:{NU} {DPPF}')
    a(f'v_cvt_pk_bf16_f32 {PK}, {Z}, {T[1]}')
    A = build4(PK, 0)
    for k in range(NU):
        An = build4(PK, k + 1) if k + 1 < NU else None
        smf(A, f'a[{AW2+8*k}:{AW2+8*k+7}]'); A = An
    publish(VPB, sT0, O_B)
    stamp('pubB')
    a(f's_cmp_lg_u32 {sW}, 0')
    a('s_cbranch_scc1 L_fin' if stamps else 's_cbranch_scc1 L_end')
    a(f'ds_read_b32 {T[6]}, {VOUT} offset:{L_H}')
    a(f's_lshl_b32 {sT2}, {sB}, 10')
    a(f'v_add_u32 {VOUT}, {sT2}, {VOUT}')
    a(f's_mov_b32 {sIT}, 0')
    a(f'v_lshlrev_b32 {T[2]}, 16, {B2R}')
    a(f'v_and_b32 {T[3]}, 0xffff0000, {B2R}')
    a('s_waitcnt lgkmcnt(0)')
    a(f'v_lshlrev_b32 {T[4]}, 16, {T[6]}')
    a(f'v_and_b32 {T[5]}, 0xffff0000, {T[6]}')
    a(f'v_pk_add_f32 {pr(T[2])}, {pr(T[2])}, {pr(T[4])}')
    if opt.get('dB', 8): a(f's_sleep {opt.get("dB", 8)}')
    a('L_pollB:')
    a(f'buffer_load_dwordx4 v[{GB}:{GB+3}], {VGB}, {srd(SSL)}, {sSLOT} offen offset:{O_B} sc1')
    zero_acc()
    a('s_waitcnt vmcnt(0)')
    smf(AI, f'v[{GB}:{GB+7}]', acc, IDX2)
    a(f'v_max3_u32 {T[4]}, v{GB}, v{GB+1}, v{GB+2}')
    a(f'v_max_u32 {T[4]}, {T[4]}, v{GB+3}')
    a(f'v_cmp_eq_u32 vcc, -1, {T[4]}')
    a('s_cbranch_vccz L_pollB_done')
    a(f's_add_u32 {sIT}, {sIT}, 1')
    a(f's_cmp_le_u32 {sIT}, 0x40000')
    a('s_nop 4')
    a('s_cbranch_scc1 L_pollB')
    a('L_pollB_done:')
    stamp('pollB')
    a('s_nop 3')
    for n in (8, 4, 2):
        for e in range(2): a(f'v_add_f32_dpp v{ACC+e}, v{ACC+e}, v{ACC+e} row_ror:{n} {DPPF}')
    a(f'v_pk_add_f32 v[{ACC}:{ACC+1}], v[{ACC}:{ACC+1}], {pr(T[2])}')
    a('s_mov_b32 exec_lo, 0x00030003')
    a('s_mov_b32 exec_hi, 0x00030003')
    a(f'v_cvt_pk_bf16_f32 {T[0]}, v{ACC}, v{ACC+1}')
    a(f'global_store_dword {VOUT}, {T[0]}, s[24:25]')
    if stamps:
        a('s_waitcnt vmcnt(0)')
        stamp('end')
        a('L_fin:')
        a('s_waitcnt lgkmcnt(0)')
        a('s_mov_b64 exec, 1')
        a('s_add_u32 s28, s28, 0x20000000')
        a('s_addc_u32 s29, s29, 0')
        a(f's_lshl_b32 {sT0}, s2, 2')
        a(f's_add_u32 {sT0}, {sT0}, {sW}')
        a(f's_mul_i32 {sT0}, {sT0}, {nst[0]*8}')
        a(f'v_mov_b32 {T[8]}, {sT0}')
        for k in range(nst[0]):
            a(f'v_mov_b32 v{RING+2*k}, s{STB+2*k}')
            a(f'v_mov_b32 v{RING+2*k+1}, s{STB+2*k+1}')
            a(f'global_store_dwordx2 {T[8]}, v[{RING+2*k}:{RING+2*k+1}], s[28:29] offset:{8*k}')
    a('L_end:')
    a('s_endpgm')
    a('.section .rodata,"a"')
    a('.p2align 6')
    a(f'.amdhsa_kernel {NAME}_kernel')
    a(f'.amdhsa_next_free_vgpr {448 + 8*NU}')
    a('.amdhsa_next_free_sgpr 102')
    a('.amdhsa_accum_offset 256')
    a('.amdhsa_group_segment_fixed_size 0')
    a('.amdhsa_kernarg_size 104')
    a('.amdhsa_user_sgpr_count 2')
    a('.amdhsa_user_sgpr_kernarg_segment_ptr 1')
    a('.amdhsa_system_sgpr_workgroup_id_x 1')
    a('.amdhsa_float_denorm_mode_32 3')
    a('.end_amdhsa_kernel')
    txt = a0.finish()
    if forced: print('FORCED WAITS before', forced)
    return HEADER + txt, stnames, a0.npad, order

if __name__ == '__main__':
    name = sys.argv[1]; opt = json.loads(sys.argv[2]) if len(sys.argv) > 2 else {}
    st = sys.argv[3].split(',') if len(sys.argv) > 3 else False
    t, n, pad, order = gen(st, opt)
    open(name, 'w').write(t)
    print(name, 'stamps', n, 'pad', pad)
    if opt.get('show'): print(' '.join(f'{t}{u}' for t, u in order))
```

```python
import sys, struct, os, json
from asmlib import Asm
NAME = 'sequential_preLN__sliding_block_cached__dense_activation_gelu__decode'
def f2u(x): return '0x%08x' % struct.unpack('<I', struct.pack('<f', x))[0]
REF = 'cdna_kernels/' + NAME + '.s.ref'
HEADER = open(REF).read().split('; Override launch')[0] if os.path.exists(REF) else ''
LOG2E = 1.4426950408889634

def merge(main, extra):
    out = []; n = len(main); m = len(extra); j = 0
    for i, o in enumerate(main):
        out.append(o)
        while j < m and (i + 1) * m >= (j + 1) * n:
            out.append(extra[j]); j += 1
    return out + extra[j:]

def gen(stamps=False, opt=None):
    opt = opt or {}
    a0 = Asm()
    auto = dict(on=False, cnt=0, n=opt.get('yn', 60), lock=0)
    def a(text):
        a0(text)
        if auto['on'] and not auto['lock']:
            t = text.strip()
            if t.startswith(('s_mov_b32 exec', 's_mov_b64 exec', 's_cmp', 's_cbranch')):
                raise RuntimeError('control/exec op in auto region without lock: ' + t)
            if t.startswith(('v_', 'ds_')):
                auto['cnt'] += 3 if '_dpp' in t and 'newbcast' not in t else 1
                if auto['cnt'] >= auto['n']:
                    auto['cnt'] = 0
                    auto['on'] = False
                    try_issue()
                    auto['on'] = True
    class locked:
        def __enter__(self): auto['lock'] += 1
        def __exit__(self, *x): auto['lock'] -= 1
    R = opt.get('R', 16); RP = R // 2
    NU = opt.get('nu', 6)
    DPPF = 'row_mask:0xf bank_mask:0xf'
    SS = 2176; O_B = 1152; O_H = 1024
    BIG = 0x1000000
    RING = 64; NP = 24
    def rp(p): return RING + 8 * (p % NP)
    AQ, AW1, AW2 = 0, 128, 192
    VK, VV, VWQ, VWO, VW1, VW2, VPUB, VGA, VGB = 'v1', 'v2', 'v3', 'v4', 'v5', 'v6', 'v7', 'v8', 'v9'
    VL, VG, VC, VT = 'v10', 'v11', 'v12', 'v13'
    MA = ['v14', 'v15', 'v16', 'v17']
    MB = ['v18', 'v19', 'v20', 'v21']
    IDX, XR, B1R, B2R, CNT, VLDS, VHL, E7 = 'v22', 'v23', 'v24', 'v25', 'v26', 'v27', 'v28', 'v29'
    Q = ['v30', 'v31', 'v32', 'v33']
    X0, X1 = 'v34', 'v35'
    AI = 30; IDX2 = 'v3'; VPB = 'v1'; VHO = 'v23'; CS = 'v26'
    ACC = 36
    A0, A1 = 40, 44
    C = ['v48', 'v49', 'v50', 'v51']
    VOUT, VZW = 'v50', 'v51'
    T = [f'v{i}' for i in range(52, 64)]
    acc = f'v[{ACC}:{ACC+3}]'
    def pr(r, n=2): return f'v[{r[1:]}:{int(r[1:])+n-1}]'
    sW, sB, sH, sJ, sHO = 's3', 's30', 's31', 's14', 's15'
    SK, SV, SWQ, SWO, SW1, SW2, SSL, SB1 = 32, 36, 40, 44, 48, 52, 56, 60
    def srd(n): return f's[{n}:{n+3}]'
    sO, sQb, sT0, sT1, sT2, sT3 = 's64', 's65', 's66', 's67', 's68', 's69'
    sSLOT, sPEND, sIT, sW1b, sW2b, sOb = 's70', 's71', 's72', 's73', 's74', 's75'
    sMB0, sMB1 = 's[76:77]', 's[78:79]'
    HS = 4
    STB = 80
    nst = [0]; stnames = []
    def stamp(name):
        if stamps and name in stamps:
            stnames.append(name)
            a0(f's_memrealtime s[{STB+2*nst[0]}:{STB+2*nst[0]+1}]'); nst[0] += 1
        if stamps and (name + '_c') in stamps:
            stnames.append(name + '_c')
            a0(f's_memtime s[{STB+2*nst[0]}:{STB+2*nst[0]+1}]'); nst[0] += 1
    L_QP, L_OP, L_SM, L_ST, L_ZP, L_CP, L_H = 0, 2048, 4096, 4160, 4352, 6400, 8448
    LDS = 9472

    def wave_reduce_ops(op, xs, sd):
        ops = []
        for n in (8, 4, 2, 1):
            for x in xs: ops.append(f'{op}_dpp {x}, {x}, {x} row_ror:{n} {DPPF}')
        for x in xs: ops.append(f'{op}_dpp {x}, {x}, {x} row_bcast:15 row_mask:0xa bank_mask:0xf')
        for x in xs: ops.append(f'{op}_dpp {x}, {x}, {x} row_bcast:31 row_mask:0xc bank_mask:0xf')
        for x, s in zip(xs, sd): ops.append(f'v_readlane_b32 {s}, {x}, 63')
        return ops
    def wave_reduce(op, xs, sd):
        for o in wave_reduce_ops(op, xs, sd): a(o)
    def bf16r(dst, src):
        a(f'v_cvt_pk_bf16_f32 {dst}, {src}, {src}')
        a(f'v_and_b32 {dst}, 0xffff0000, {dst}')
    def bf16r2(d0, d1, s0, s1):
        a(f'v_cvt_pk_bf16_f32 {d1}, {s0}, {s1}')
        a(f'v_lshlrev_b32 {d0}, 16, {d1}')
        a(f'v_and_b32 {d1}, 0xffff0000, {d1}')
    kk = [0]
    def build4(src, lane):
        A = A0 if kk[0] % 2 == 0 else A1; kk[0] += 1
        for r in range(4):
            a(f'v_and_b32_dpp v{A+r}, {src}, {MA[r]} row_newbcast:{lane} {DPPF}')
        return A
    def build8(src, lane, filler=None):
        A = A0 if kk[0] % 2 == 0 else A1
        x = T[10 + kk[0] % 2]; kk[0] += 1
        a(f'v_mov_b32_dpp {x}, {src} row_newbcast:{lane} row_mask:0xf bank_mask:0x3')
        if filler:
            for _ in range(2):
                if filler: a(filler.pop(0))
        a(f'v_mov_b32_dpp {x}, {src} row_newbcast:{lane+8} row_mask:0xf bank_mask:0xc')
        for r in range(4):
            a(f'v_and_b32 v{A+r}, {x}, {MB[r]}')
        return A
    def smf(A, B, D=acc, idx=IDX):
        a(f'v_smfmac_f32_16x16x64_bf16 {D}, v[{A}:{A+3}], {B}, {idx}')
    def zero_acc(base=ACC):
        for r in range(4): a(f'v_mov_b32 v{base+r}, 0')
    def rs4(Rr, filler=None):
        def f():
            if filler: a(filler.pop(0))
        a(f'v_permlane32_swap_b32 {Rr[0]}, {Rr[2]}')
        a(f'v_permlane32_swap_b32 {Rr[1]}, {Rr[3]}')
        a(f'v_add_f32 {Rr[0]}, {Rr[0]}, {Rr[2]}')
        a(f'v_add_f32 {Rr[1]}, {Rr[1]}, {Rr[3]}')
        f(); f()
        a(f'v_permlane16_swap_b32 {Rr[0]}, {Rr[1]}')
        a(f'v_add_f32 {Rr[0]}, {Rr[0]}, {Rr[1]}')
    def publish(voff, soff, off):
        a('s_mov_b32 exec_hi, 0')
        a(f'v_cvt_pk_bf16_f32 {T[0]}, v{ACC}, v{ACC+1}')
        a(f'v_cvt_pk_bf16_f32 {T[1]}, v{ACC+2}, v{ACC+3}')
        a(f'v_min_u32 {T[0]}, -2, {T[0]}')
        a(f'v_min_u32 {T[1]}, -2, {T[1]}')
        a(f'buffer_store_dwordx2 {pr(T[0])}, {voff}, {srd(SSL)}, {soff} offen offset:{off} sc1')
        a('s_mov_b32 exec_hi, -1')

    a(f'; @launch grid=(256,1,1) block=(256,1,1) lds={LDS}')
    a('.amdgcn_target "amdgcn-amd-amdhsa--gfx950"')
    a('.text')
    a(f'.globl {NAME}_kernel')
    a('.p2align 8')
    a(f'.type {NAME}_kernel,@function')
    a(f'{NAME}_kernel:')
    fast = opt.get('fast', 0)
    a('s_load_dwordx8 s[4:11], s[0:1], 0')
    pro = opt.get('pro', 0)
    if pro == 1: a('s_load_dwordx2 s[28:29], s[0:1], 96')
    if not fast and not pro:
        a('s_load_dwordx8 s[12:19], s[0:1], 32')
        a('s_load_dwordx8 s[20:27], s[0:1], 64')
        a('s_load_dwordx2 s[28:29], s[0:1], 96')
    a('s_cmp_ge_u32 s2, 256')
    a('s_cbranch_scc1 L_end')
    stamp('start')
    if fast:
        a(f'v_lshrrev_b32 {VK}, 4, v0')
        a(f'v_and_b32 {VC}, 15, v0')
        a(f's_lshl_b32 {sT1}, s2, 20')
        a(f'v_lshlrev_b32 {VK}, 9, {VK}')
        a(f's_or_b32 {sT1}, {sT1}, 0xC0000')
        a(f'v_lshl_add_u32 {VK}, {VC}, 4, {VK}')
        a(f's_mov_b32 s{SK+2}, 0x40000')
        a(f's_mov_b32 s{SK+3}, 0x20000')
        a(f's_movk_i32 {sO}, 0x2000')
        a('s_waitcnt lgkmcnt(0)')
        stamp('ka0')
        a(f's_add_u32 s{SK}, s6, {sT1}')
        a(f's_addc_u32 s{SK+1}, s7, 0')
        for u in range(fast):
            b = RING + 8 * u
            so = '0' if u == 0 else sO
            if u > 1: a(f's_add_u32 {sO}, {sO}, 0x2000')
            a(f'buffer_load_dwordx4 v[{b}:{b+3}], {VK}, {srd(SK)}, {so} offen nt')
            a(f'buffer_load_dwordx4 v[{b+4}:{b+7}], {VK}, {srd(SK)}, {so} offen offset:256 nt')
        a('s_load_dwordx8 s[12:19], s[0:1], 32')
        a('s_load_dwordx8 s[20:27], s[0:1], 64')
        a('s_load_dwordx2 s[28:29], s[0:1], 96')
    a(f'v_lshrrev_b32 {VT}, 6, v0')
    a(f'v_and_b32 {VL}, 63, v0')
    a(f'v_readfirstlane_b32 {sW}, {VT}')
    a(f'v_lshrrev_b32 {VG}, 4, {VL}')
    a(f'v_and_b32 {VC}, 15, v0')
    a(f's_lshr_b32 {sB}, s2, 5')
    a(f's_and_b32 {sH}, s2, 31')
    a(f'v_lshlrev_b32 {VV}, 11, {VT}')
    if not fast:
        a(f'v_lshl_add_u32 {VK}, {VG}, 9, {VV}')
        a(f'v_lshl_add_u32 {VK}, {VC}, 4, {VK}')
    a(f'v_lshl_add_u32 {VV}, {VL}, 4, {VV}')
    a(f'v_lshlrev_b32 {VWQ}, 13, {VG}')
    a(f'v_lshl_add_u32 {VWQ}, {VC}, 4, {VWQ}')
    a(f's_lshl_b32 {sT0}, {sB}, 10')
    a(f'v_lshl_add_u32 {T[2]}, {VL}, 4, {sT0}')
    a(f'v_lshlrev_b32 {T[3]}, 8, {VT}')
    a(f'v_lshl_add_u32 {VGA}, {VC}, 4, {T[3]}')
    a(f'v_lshl_add_u32 {VHL}, {VG}, 2, {VGA}')
    a(f'v_add_u32 {CNT}, {sT0}, {VHL}')
    a(f'v_lshlrev_b32 {B2R}, 4, v0')
    a(f'v_cmp_gt_u32 vcc, {O_B if opt.get("mkb") else SS}, {B2R}')
    a(f'v_mov_b32 {T[0]}, {BIG:#x}')
    for r in range(4): a(f'v_mov_b32 v{A0+r}, -1')
    a(f'v_cndmask_b32 {B2R}, {T[0]}, {B2R}, vcc')
    hmap = opt.get('hmap', 0)
    sHD = 's101' if hmap else sH
    if hmap:
        a(f's_and_b32 {sHD}, {sH}, 7')
        a(f's_lshl_b32 {sHD}, {sHD}, 2')
        a(f's_lshr_b32 {sT1}, {sH}, 3')
        a(f's_add_u32 {sHD}, {sHD}, {sT1}')
        a(f's_and_b32 {sT1}, s2, 0xe0')
        a(f's_add_u32 {sT1}, {sT1}, {sHD}')
        a(f's_lshl_b32 {sT1}, {sT1}, 20')
    else:
        a(f's_lshl_b32 {sT1}, s2, 20')
    a(f's_add_u32 {sT1}, {sT1}, 0xC0000')
    a(f's_mul_i32 {sSLOT}, {sH}, {SS}')
    a(f's_mul_i32 {sT2}, {sB}, {32*SS}')
    a(f's_lshl_b32 {sQb}, {sW}, 20')
    a(f's_lshl_b32 {sT3}, {sHD}, 8')
    a(f's_add_u32 {sQb}, {sQb}, {sT3}')
    SZ = ((SK, 0x40000), (SWQ, 0x400000), (SSL, 32 * SS), (SV, 0x40000), (SWO, 0x400000), (SW1, 512 * 2752), (SW2, 1376 * 1024), (SB1, 2752))
    for n, sz in (SZ[:3] if pro else SZ):
        a(f's_mov_b32 s{n+2}, {sz:#x}')
        a(f's_mov_b32 s{n+3}, 0x20000')
    a('s_waitcnt lgkmcnt(0)')
    stamp('ka')
    if opt.get('stouch', 0) & 4:
        a(f's_lshl_b32 {sT0}, s2, 7')
        a(f's_add_u32 {sT3}, {sT0}, 0x100000')
        a(f's_load_dword s100, s[28:29], {sT3}')
        a(f's_load_dword s100, s[10:11], {sQb}')
        a(f's_load_dword s100, s[4:5], 0')
    a(f's_add_u32 s{SK}, s6, {sT1}')
    a(f's_addc_u32 s{SK+1}, s7, 0')
    a(f's_mov_b32 s{SWQ}, s10')
    a(f's_mov_b32 s{SWQ+1}, s11')
    if pro:
        a('s_load_dwordx8 s[12:19], s[0:1], 32')
        a('s_load_dwordx8 s[20:27], s[0:1], 64')
        if pro == 2: a('s_load_dwordx2 s[28:29], s[0:1], 96')
    if pro != 2:
        a(f's_add_u32 s{SSL}, s28, {sT2}')
        a(f's_addc_u32 s{SSL+1}, s29, 0')

    vm = []; issued = set()
    def issue(tag, text): a0(text); vm.append(tag); issued.add(tag)
    def waitfor(tag):
        if tag not in vm: return
        i = vm.index(tag)
        a0(f's_waitcnt vmcnt({len(vm) - 1 - i})')
        del vm[:i + 1]
    def arrived(tag): return tag in issued and tag not in vm
    ringuse = {}; ringn = [0]; slot_of = {}
    def issue_pair(op):
        t, u = op
        if t in 'KV':
            p = ringn[0]; ringn[0] += 1
            assert ringuse.get(p % NP) is None
            ringuse[p % NP] = op; slot_of[op] = rp(p)
            b = rp(p)
            a0(f's_mov_b32 {sO}, {u*8192}')
            vo, sr, o2 = (VK, SK, 256) if t == 'K' else (VV, SV, 1024)
            issue((t, u, 0), f'buffer_load_dwordx4 v[{b}:{b+3}], {vo}, {srd(sr)}, {sO} offen nt')
            issue((t, u, 1), f'buffer_load_dwordx4 v[{b+4}:{b+7}], {vo}, {srd(sr)}, {sO} offen offset:{o2} nt')
        else:
            base, vo, sr, sb, offs = {
                'Q': (AQ, VWQ, SWQ, sQb, [(2 * u + L) * 32768 for L in (0, 1)]),
                'O': (AQ, VWO, SWO, sOb, [(2 * u + L) * 4096 for L in (0, 1)]),
                'F': (AW1, VW1, SW1, sW1b, [(2 * u + L) * 11008 for L in (0, 1)]),
                'S': (AW2, VW2, SW2, sW2b, [(2 * u + L) * 2048 for L in (0, 1)]),
            }[t]
            for L in (0, 1):
                b = base + 8 * u + 4 * L
                a0(f's_add_u32 {sO}, {sb}, {offs[L]}')
                issue((t, u, L), f'buffer_load_dwordx4 a[{b}:{b+3}], {vo}, {srd(sr)}, {sO} offen nt')
    def free_slot(op):
        for k, v in ringuse.items():
            if v == op: ringuse[k] = None

    K = [('K', u) for u in range(32)]; V = [('V', u) for u in range(32)]
    Qo = [('Q', u) for u in range(16)]; Oo = [('O', u) for u in range(16)]
    Fo = [('F', u) for u in range(8)]; So = [('S', u) for u in range(NU)]
    nq = opt.get('nq', 16)
    order = merge(Qo, K[:nq]) if nq < 16 else merge(K[:nq], Qo)
    for i in range(max(fast, opt.get('kfirst', 1))):
        order.remove(K[i]); order.insert(i, K[i])
    rest = K[nq:] + V
    ns_late = opt.get('slate', 0)
    no = len(rest) - opt.get('tailv', 2)
    no_late = opt.get('olate', 0)
    Oe = Oo[:16 - no_late]; Se = So[:NU - ns_late]
    ford = opt.get('ford', 0)
    if ford == 0: ex = Fo + Se + Oe
    elif ford == 1: ex = Fo[:3] + merge(Oe[:-3], Fo[3:] + Se) + Oe[-3:]
    elif ford == 2: ex = Fo[:3] + Oe[:-3] + Fo[3:] + Se + Oe[-3:]
    if ford == 3:
        order = merge(K[:nq], merge(Qo, Fo)); order.remove(K[0]); order.insert(0, K[0])
        ex = Se + Oe
        k0 = 5
        order += rest[:k0] + merge(rest[k0:no], ex) + rest[no:]
    else:
        order += merge(rest[:no], ex) + rest[no:]
    NQ = opt.get('qfake', 16)
    if NQ < 16:
        kv = K + V
        order = [kv[0]] + Qo[:NQ] + merge(kv[1:62], Fo + Se + Oe) + kv[62:]
    late = Oo[16 - no_late:] + So[NU - ns_late:]

    P = dict(pos=0, setup=False)
    state = dict(q=0, k=0, v=0, qready=False, pready=False, cs=False, cnt=False)
    def can_issue():
        if P['pos'] >= len(order): return False
        op = order[P['pos']]
        if len(vm) + 2 > 58: return False
        if op[0] in 'VOFS' and not P['setup']: return False
        if op[0] in 'KV' and ringuse.get(ringn[0] % NP) is not None: return False
        if op[0] == 'O' and state['q'] <= op[1]: return False
        return True
    def try_issue():
        if can_issue():
            issue_pair(order[P['pos']]); P['pos'] += 1
            bn = opt.get('bn', 0)
            if bn and P['pos'] >= opt.get('bfrom', 14) and (len(order) - P['pos']) % bn == 0: a0('s_barrier')
            return True
        return False
    def marker():
        if pro == 2:
            a('s_waitcnt lgkmcnt(0)')
            a(f's_add_u32 s{SSL}, s28, {sT2}')
            a(f's_addc_u32 s{SSL+1}, s29, 0')
        if not opt.get('nomk'): issue('MK', f'buffer_store_dwordx4 v[{A0}:{A0+3}], {B2R}, {srd(SSL)}, {sSLOT} offen {opt.get("mkf", "sc1")}')
    for u in range(fast):
        op = ('K', u); p = ringn[0]; ringn[0] += 1
        ringuse[p % NP] = op; slot_of[op] = rp(p)
        for L in (0, 1): vm.append(('K', u, L)); issued.add(('K', u, L))
        P['pos'] += 1
    mkpos = opt.get('mkpos', 0)
    if opt.get('stouch', 0) & 2: a(f's_buffer_load_dword s100, {srd(SSL)}, {sSLOT}')
    xpos = opt.get('xpos', 0)
    def xloads():
        issue('X8', f'global_load_dwordx4 {pr(T[4], 4)}, {T[2]}, s[4:5]')
        issue('XR', f'global_load_dword {XR}, {CNT}, s[4:5]')
    if mkpos == 0: marker()
    if xpos == 0: xloads()
    for i in range(opt.get('n0', 6) - fast):
        try_issue()
        stamp(f'i{i}')
        if xpos == i + 1: xloads()
        if mkpos == i + 1: marker()
    if opt.get('diagk'):
        waitfor(('K', 0, 0)); stamp('k0')
    stamp('issued')
    if opt.get('diagx'):
        waitfor('XR'); stamp('xr')
        waitfor('MK'); stamp('mk')
    if pro:
        for n, sz in SZ[3:]:
            a(f's_mov_b32 s{n+2}, {sz:#x}')
            a(f's_mov_b32 s{n+3}, 0x20000')
        a('s_waitcnt lgkmcnt(0)')
    a(f's_add_u32 s{SV}, s8, {sT1}')
    a(f's_addc_u32 s{SV+1}, s9, 0')
    for n, p in ((SWO, 12), (SW1, 16), (SW2, 20), (SB1, 18)):
        a(f's_mov_b32 s{n}, s{p}')
        a(f's_mov_b32 s{n+1}, s{p+1}')
    a('s_mov_b32 s76, 0xaaaaaaaa'); a('s_mov_b32 s77, 0xaaaaaaaa')
    a('s_mov_b32 s78, 0xcccccccc'); a('s_mov_b32 s79, 0xcccccccc')
    a(f's_lshl_b32 {sOb}, {sHD}, 17')
    a(f's_and_b32 {sJ}, {sH}, 7')
    a(f's_lshl_b32 {sJ}, {sJ}, 2')
    a(f's_lshr_b32 {sT0}, {sH}, 3')
    a(f's_add_u32 {sJ}, {sJ}, {sT0}')
    a(f's_cmp_eq_u32 {sW}, 0')
    a(f's_cselect_b32 {sHO}, {sJ}, {BIG:#x}')
    if opt.get('prio'):
        tab = 0
        for rank, g in enumerate(opt['prio']): tab |= rank << (4 * g)
        a(f's_and_b32 {sJ}, {sJ}, 0x1c')
        a(f's_lshr_b32 {sJ}, {tab:#x}, {sJ}')
        a(f's_and_b32 {sJ}, {sJ}, 7')
        a(f's_lshl_b32 {sJ}, {sJ}, 2')
        a(f's_add_u32 {sJ}, {sJ}, {sT0}')
    a(f's_mul_i32 {sW1b}, {sJ}, {16*NU}')
    a(f's_mul_i32 {sW2b}, {sJ}, {8*NU*1024}')
    NH = opt.get('nh', 32)
    a(f's_and_b32 {sT0}, {sH}, {NH-1}')
    a(f's_mul_i32 {sT0}, {sT0}, {SS}')
    a(f's_add_u32 s12, s{SSL}, {sT0}')
    a(f's_addc_u32 s13, s{SSL+1}, 0')
    if opt.get('stouch', 0) & 1:
        a(f's_buffer_load_dword s100, {srd(SV)}, 0')
        a(f's_buffer_load_dword s100, {srd(SWO)}, {sOb}')
        a(f's_buffer_load_dword s100, {srd(SW2)}, {sW2b}')
        a(f's_buffer_load_dword s100, {srd(SW1)}, {sW1b}')
        a(f's_add_u32 {sT0}, {sW1b}, {511*2752}')
        a(f's_buffer_load_dword s100, {srd(SW1)}, {sT0}')
        a(f's_buffer_load_dword s100, {srd(SB1)}, 0')
        a(f's_load_dword s100, s[22:23], 0')
        a(f's_load_dword s100, s[24:25], 0')
        a(f's_load_dword s100, s[26:27], 0')
    HALF, GH, GL = T[2], T[0], T[1]
    a(f'v_lshrrev_b32 {GH}, 1, {VG}')
    a(f'v_and_b32 {GL}, 1, {VG}')
    a(f'v_and_b32 {E7}, 7, v0')
    a(f'v_bfe_u32 {HALF}, v0, 3, 1')
    a(f'v_and_b32 {IDX}, 3, v0')
    a(f'v_mul_u32_u24 {IDX}, 0x5555, {IDX}')
    a(f'v_mov_b32 {T[8]}, 0xffff')
    a(f'v_mov_b32 {T[9]}, 0xffff0000')
    a(f'v_lshrrev_b32 {T[3]}, 2, {VC}')
    a(f'v_cmp_eq_u32 vcc, 0, {T[3]}')
    a(f'v_cndmask_b32 {MA[0]}, 0, {T[8]}, vcc'); a(f'v_cndmask_b32 {MA[2]}, 0, {T[9]}, vcc')
    a(f'v_cmp_eq_u32 vcc, 1, {T[3]}')
    a(f'v_cndmask_b32 {MA[1]}, 0, {T[8]}, vcc'); a(f'v_cndmask_b32 {MA[3]}, 0, {T[9]}, vcc')
    a(f'v_cmp_gt_u32 vcc, 4, {E7}')
    a(f'v_cndmask_b32 {MB[0]}, 0, {T[8]}, vcc'); a(f'v_cndmask_b32 {MB[2]}, 0, {T[9]}, vcc')
    a(f'v_xor_b32 {MB[1]}, {T[8]}, {MB[0]}'); a(f'v_xor_b32 {MB[3]}, {T[9]}, {MB[2]}')
    a(f'v_lshl_add_u32 {VWO}, {VG}, 10, {VGA}')
    a(f'v_mul_u32_u24 {VW2}, {4*NU}, {GL}')
    a(f'v_add_u32 {VW2}, {VW2}, {GH}')
    a(f'v_lshl_add_u32 {VW2}, {VW2}, 10, {VGA}')
    a(f'v_lshl_add_u32 {VW1}, {HALF}, 6, {VG}')
    a(f'v_lshl_add_u32 {VW1}, {VT}, 7, {VW1}')
    a(f'v_mul_u32_u24 {VW1}, 2752, {VW1}')
    a(f'v_lshl_add_u32 {VW1}, {E7}, 4, {VW1}')
    a(f's_mul_i32 {sT0}, {sJ}, {NU}')
    a(f's_sub_i32 {sT0}, 172, {sT0}')
    a(f's_min_i32 {sT0}, {sT0}, {NU}')
    a(f'v_cmp_gt_i32 vcc, {sT0}, {E7}')
    a(f'v_mov_b32 {T[3]}, 0x7fff0000')
    a(f'v_cndmask_b32 {VW1}, {T[3]}, {VW1}, vcc')
    a(f'v_lshl_add_u32 {VPUB}, {VG}, 3, {VGA}')
    a(f'v_mul_u32_u24 {T[3]}, {8*SS}, {VG}')
    a(f'v_add_u32 {VGA}, {VGA}, {T[3]}')
    a(f'v_lshlrev_b32 {VGB}, 4, {VL}')
    a(f'v_lshlrev_b32 {VLDS}, 1, {VPUB}')
    zero_acc()
    P['setup'] = True
    while P['pos'] < opt.get('n1', 12):
        try_issue()
        if mkpos == P['pos']: marker()
    stamp('n1')
    waitfor('XR')
    stamp('xr2')
    auto['on'] = True
    X = [C[0], C[1], C[2], C[3], T[8], T[9], T[10], T[11]]
    for k in range(4):
        a(f'v_lshlrev_b32 {X[2*k]}, 16, {T[4+k]}')
        a(f'v_and_b32 {X[2*k+1]}, 0xffff0000, {T[4+k]}')
    a(f'v_lshlrev_b32 {X0}, 16, {XR}')
    a(f'v_and_b32 {X1}, 0xffff0000, {XR}')
    a(f'v_add_f32 {T[4]}, {X[0]}, {X[1]}'); a(f'v_add_f32 {T[5]}, {X[2]}, {X[3]}')
    a(f'v_add_f32 {T[6]}, {X[4]}, {X[5]}'); a(f'v_add_f32 {T[7]}, {X[6]}, {X[7]}')
    a(f'v_add_f32 {T[4]}, {T[4]}, {T[5]}'); a(f'v_add_f32 {T[6]}, {T[6]}, {T[7]}')
    a(f'v_add_f32 {T[4]}, {T[4]}, {T[6]}')
    wave_reduce('v_add_f32', [T[4]], [sT0])
    a(f'v_mov_b32 {T[5]}, {f2u(1.0/512)}')
    a(f'v_mul_f32 {T[5]}, {sT0}, {T[5]}')
    for k in range(8): a(f'v_sub_f32 {X[k]}, {X[k]}, {T[5]}')
    a(f'v_mul_f32 {T[4]}, {X[0]}, {X[0]}')
    for k in range(1, 8): a(f'v_fmac_f32 {T[4]}, {X[k]}, {X[k]}')
    wave_reduce('v_add_f32', [T[4]], [sT0])
    a(f'v_mov_b32 {T[6]}, {f2u(1.0/512)}')
    a(f'v_mul_f32 {T[6]}, {sT0}, {T[6]}')
    XN = XR
    mean, var, t0, t1 = T[5], T[6], T[8], T[9]
    bf16r2(mean, var, mean, var)
    a(f'v_add_f32 {var}, {f2u(1e-5)}, {var}')
    a(f'v_sub_f32 {t0}, {X0}, {mean}')
    bf16r(var, var)
    a(f'v_sqrt_f32 {var}, {var}')
    a(f'v_sub_f32 {t1}, {X1}, {mean}')
    bf16r(var, var)
    a(f'v_rcp_f32 {var}, {var}')
    bf16r2(t0, t1, t0, t1)
    a(f'v_mul_f32 {t0}, {t0}, {var}')
    a(f'v_mul_f32 {t1}, {t1}, {var}')
    a(f'v_cvt_pk_bf16_f32 {XN}, {t0}, {t1}')

    U = [[T[0], T[1], T[2], T[3]], [T[4], T[5], T[6], T[7]]]
    TMP = [[T[8], T[9]], [T[10], T[11]]]
    lane_of = {}
    def do_q(u):
        A = build4(XN, u)
        smf(A, f'a[{AQ+8*u}:{AQ+8*u+7}]')
    def q_finish():
        try_issue()
        with locked():
            a('s_mov_b32 exec_hi, 0')
            a(f'ds_write_b128 {VLDS}, {acc} offset:{L_QP}')
            a('s_mov_b32 exec_hi, -1')
        a(f'v_lshlrev_b32 {CNT}, 5, {VC}')
        a('s_waitcnt lgkmcnt(0)')
        a('s_barrier')
        stamp('qbar')
        with locked():
            a(f's_cmp_lg_u32 {sW}, 0')
            a('s_cbranch_scc1 L_nosig')
            a(f's_lshl_b32 {sT0}, {sB}, 5')
            a(f'v_mov_b32 {T[0]}, {sT0}')
            a(f'v_mov_b32 {T[1]}, 1')
            a('s_mov_b64 exec, 1')
            a(f'global_atomic_add {T[0]}, {T[1]}, s[26:27] sc1')
            a('s_mov_b64 exec, -1')
            a('L_nosig:')
        try_issue()
        B0 = 40; d3 = int(T[4][1:])
        for half in range(2):
            for p in range(4):
                d = B0 + 4 * p if p < 3 else d3
                a(f'ds_read_b128 v[{d}:{d+3}], {CNT} offset:{L_QP + p*512 + half*16}')
            a('s_waitcnt lgkmcnt(0)')
            for e in range(4):
                a(f'v_add_f32 v{B0+e}, v{B0+e}, v{B0+4+e}')
                a(f'v_add_f32 v{B0+8+e}, v{B0+8+e}, v{d3+e}')
            for e in range(4): a(f'v_add_f32 v{B0+e}, v{B0+e}, v{B0+8+e}')
            a(f'v_cvt_pk_bf16_f32 {Q[2*half]}, v{B0}, v{B0+1}')
            a(f'v_cvt_pk_bf16_f32 {Q[2*half+1]}, v{B0+2}, v{B0+3}')
        zero_acc()
    def do_k(u):
        b = slot_of[('K', u)]
        i = u % 16
        S = [[U[ch][i // 4], TMP[ch][0], TMP[ch][1], TMP[ch][0]][i % 4] for ch in range(2)]
        for r in range(4):
            for ch in range(2):
                a(f'v_dot2_f32_bf16 {S[ch]}, v{b+4*ch+r}, {Q[r]}, {"0" if r == 0 else S[ch]}')
        free_slot(('K', u))
        if i % 2 == 1:
            for ch in range(2):
                sa = U[ch][i // 4] if i % 4 == 1 else TMP[ch][1]
                a(f'v_add_f32_dpp {sa}, {sa}, {sa} row_ror:8 row_mask:0xf bank_mask:0x3')
            for ch in range(2):
                sa = U[ch][i // 4] if i % 4 == 1 else TMP[ch][1]
                sb = TMP[ch][0]
                a(f'v_add_f32_dpp {sa}, {sb}, {sb} row_ror:8 row_mask:0xf bank_mask:0xc')
        if i % 4 == 3:
            for ch in range(2):
                ta = U[ch][i // 4]
                a(f'v_add_f32_dpp {ta}, {ta}, {ta} row_half_mirror row_mask:0xf bank_mask:0x5')
            for ch in range(2):
                ta, tb = U[ch][i // 4], TMP[ch][1]
                a(f'v_add_f32_dpp {ta}, {tb}, {tb} row_half_mirror row_mask:0xf bank_mask:0xa')
        lane_of[u] = ((i & 1) << 3) | (((i >> 1) & 1) << 2) | ((i >> 2) & 1) | (((i >> 3) & 1) << 1)
        if i == 15:
            for ch in range(2):
                for x in U[ch]: a(f'v_add_f32_dpp {x}, {x}, {x} quad_perm:[1,0,3,2] {DPPF}')
            for ch in range(2):
                a(f'v_cndmask_b32 {U[ch][0]}, {U[ch][0]}, {U[ch][1]}, {sMB0}')
                a(f'v_cndmask_b32 {U[ch][2]}, {U[ch][2]}, {U[ch][3]}, {sMB0}')
            for ch in range(2):
                for x in (U[ch][0], U[ch][2]): a(f'v_add_f32_dpp {x}, {x}, {x} quad_perm:[2,3,0,1] {DPPF}')
            for ch in range(2):
                a(f'v_cndmask_b32 {C[2*(u//16)+ch]}, {U[ch][0]}, {U[ch][2]}, {sMB1}')
    def softmax():
        stamp('qkdone')
        for k in (0, 2): bf16r2(C[k], C[k+1], C[k], C[k+1])
        for k in range(4): a(f'v_mul_f32 {C[k]}, {f2u(128 ** -0.5)}, {C[k]}')
        for k in (0, 2): bf16r2(C[k], C[k+1], C[k], C[k+1])
        a(f'v_max_f32 {T[0]}, {C[0]}, {C[1]}')
        a(f'v_max3_f32 {T[0]}, {T[0]}, {C[2]}, {C[3]}')
        wave_reduce('v_max_f32', [T[0]], [sT0])
        for k in range(4): a(f'v_subrev_f32 {T[k]}, {sT0}, {C[k]}')
        for k in range(4): a(f'v_mul_f32 {T[k]}, {f2u(LOG2E)}, {T[k]}')
        for k in range(4): a(f'v_exp_f32 {T[k]}, {T[k]}')
        a(f'v_add_f32 {T[0]}, {T[0]}, {T[1]}')
        a(f'v_add_f32 {T[2]}, {T[2]}, {T[3]}')
        a(f'v_add_f32 {T[0]}, {T[0]}, {T[2]}')
        wave_reduce('v_add_f32', [T[0]], [sT1])
        a(f'v_mov_b32 {T[0]}, {sT0}')
        a(f'v_mov_b32 {T[1]}, {sT1}')
        a(f'v_lshlrev_b32 {T[2]}, 3, {VT}')
        a(f'ds_write_b64 {T[2]}, {pr(T[0])} offset:{L_SM}')
        a(f'v_and_b32 {T[2]}, 3, v0')
        a(f'v_lshlrev_b32 {T[2]}, 3, {T[2]}')
        a('s_waitcnt lgkmcnt(0)')
        a('s_barrier')
        a(f'ds_read_b64 {pr(T[0])}, {T[2]} offset:{L_SM}')
        try_issue()
        a('s_waitcnt lgkmcnt(0)')
        a(f'v_max_f32_dpp {T[2]}, {T[0]}, {T[0]} quad_perm:[1,0,3,2] {DPPF}')
        a(f'v_max_f32_dpp {T[2]}, {T[2]}, {T[2]} quad_perm:[2,3,0,1] {DPPF}')
        a(f'v_sub_f32 {T[0]}, {T[0]}, {T[2]}')
        for k in range(4): a(f'v_sub_f32 {C[k]}, {C[k]}, {T[2]}')
        a(f'v_mul_f32 {T[0]}, {f2u(LOG2E)}, {T[0]}')
        for k in range(4): a(f'v_mul_f32 {C[k]}, {f2u(LOG2E)}, {C[k]}')
        a(f'v_exp_f32 {T[0]}, {T[0]}')
        for k in range(4): a(f'v_exp_f32 {C[k]}, {C[k]}')
        a(f'v_mul_f32 {T[1]}, {T[1]}, {T[0]}')
        a(f'v_add_f32_dpp {T[1]}, {T[1]}, {T[1]} quad_perm:[1,0,3,2] {DPPF}')
        a(f'v_add_f32_dpp {T[1]}, {T[1]}, {T[1]} quad_perm:[2,3,0,1] {DPPF}')
        a(f'v_rcp_f32 {T[1]}, {T[1]}')
        for k in range(4): a(f'v_mul_f32 {C[k]}, {C[k]}, {T[1]}')
        a(f'v_cvt_pk_bf16_f32 {C[0]}, {C[0]}, {C[1]}')
        a(f'v_cvt_pk_bf16_f32 {C[1]}, {C[2]}, {C[3]}')
        stamp('smdone')
        a(f's_lshl_b32 {sT0}, {sB}, 5')
        a(f'v_mov_b32 {T[0]}, {sT0}')
        issue('CNT', f'global_load_dword {CNT}, {T[0]}, s[26:27] sc1')
        a(f'v_lshl_add_u32 {T[1]}, {VC}, 2, {VG}')
        a(f's_mul_i32 {sT0}, {sJ}, {8*NU}')
        a(f'v_add_lshl_u32 {T[2]}, {T[1]}, {sT0}, 1')
        issue('B1', f'buffer_load_ushort {B1R}, {T[2]}, {srd(SB1)}, 0 offen')
        a(f'v_and_b32 {T[5]}, 1, v0')
        a(f'v_lshlrev_b32 {T[1]}, 2, {VG}')
        a(f'v_lshl_add_u32 {T[1]}, {T[5]}, 4, {T[1]}')
        a(f's_lshl_b32 {sT0}, {sH}, 5')
        a(f'v_add_u32 {VOUT}, {sT0}, {T[1]}')
        issue('B2', f'global_load_dword {B2R}, {VOUT}, s[22:23]')
        a(f'v_cmp_gt_u32 vcc, 8, {VC}')
        a(f'v_mov_b32 {T[3]}, 0x3f80')
        a(f'v_bfe_u32 {T[4]}, v0, 2, 1')
        a(f'v_cndmask_b32 v{AI}, 0, {T[3]}, vcc')
        a(f'v_xor_b32 v{AI+1}, {T[3]}, v{AI}')
        a(f'v_mov_b32 v{AI+2}, v{AI}')
        a(f'v_mov_b32 v{AI+3}, v{AI+1}')
        a(f'v_lshl_add_u32 {IDX2}, {T[4]}, 1, {T[5]}')
        a(f'v_mul_u32_u24 {IDX2}, 0x5555, {IDX2}')
        a(f'v_lshrrev_b32 {VPB}, 1, {VC}')
        a(f'v_lshl_add_u32 {VPB}, {VT}, 3, {VPB}')
        a(f'v_mul_u32_u24 {VPB}, {SS}, {VPB}')
        a(f'v_lshl_add_u32 {VPB}, {T[5]}, 4, {VPB}')
        a(f'v_lshl_add_u32 {VPB}, {VG}, 3, {VPB}')
        a(f'v_and_b32 {VHO}, 31, v0')
        a(f'v_mul_u32_u24 {VHO}, {SS}, {VHO}')
        a(f'v_lshrrev_b32 {VZW}, 1, {VG}')
        a(f'v_lshl_add_u32 {VZW}, {VT}, 1, {VZW}')
        a(f'v_lshlrev_b32 {VZW}, 8, {VZW}')
        a(f'v_lshl_add_u32 {VZW}, {E7}, 5, {VZW}')
        a(f'v_and_b32 {T[1]}, 1, {VG}')
        a(f'v_lshl_add_u32 {VZW}, {T[1]}, 4, {VZW}')
    def colsum():
        D = int(T[4][1:])
        a(f'v_mov_b32 {T[0]}, 0x3f803f80')
        zero_acc(D)
        A = A0 if kk[0] % 2 == 0 else A1; kk[0] += 1
        for r in range(4): a(f'v_and_b32 v{A+r}, {T[0]}, {MB[r]}')
        for u in range(8): smf(A, f'a[{AW1+8*u}:{AW1+8*u+7}]', f'v[{D}:{D+3}]')
        with locked():
            a('s_mov_b32 exec_lo, 0x00ff00ff')
            a('s_mov_b32 exec_hi, 0xff00ff00')
            a(f'ds_write_b128 {VZW}, v[{D}:{D+3}] offset:{L_CP}')
            a('s_mov_b64 exec, -1')
    def do_v(u, wait=False):
        b = slot_of[('V', u)]
        A = build4(C[u // 16], lane_of[u])
        if wait: waitfor(('V', u, 1))
        smf(A, f'v[{b}:{b+7}]')
        free_slot(('V', u))
    def cnt_check():
        a(f'v_readfirstlane_b32 {sT0}, {CNT}')
        a(f's_cmp_ge_u32 {sT0}, 32')
        a('s_cbranch_scc1 L_cntok')
        a(f's_mov_b32 {sIT}, 0')
        a(f's_lshl_b32 {sT0}, {sB}, 5')
        a(f'v_mov_b32 {T[0]}, {sT0}')
        a('L_cntspin:')
        a(f'global_load_dword {CNT}, {T[0]}, s[26:27] sc1')
        a('s_waitcnt vmcnt(0)')
        a(f'v_readfirstlane_b32 {sT0}, {CNT}')
        a(f's_add_u32 {sIT}, {sIT}, 1')
        a(f's_cmp_gt_u32 {sIT}, 0x40000')
        a('s_cbranch_scc1 L_cntok')
        a('s_sleep 4')
        a(f's_cmp_lt_u32 {sT0}, 32')
        a('s_cbranch_scc1 L_cntspin')
        a('L_cntok:')
    burst = opt.get('burst', 3)
    forced = []
    pstamps = list(range(20, 110, 10))
    def consume():
        while state['q'] < 16 and arrived(('Q', min(state['q'], NQ - 1), 1)) and (NQ == 16 or P['pos'] >= 22):
            do_q(state['q']); state['q'] += 1
            if state['q'] == 16: q_finish(); state['qready'] = True; return
        n = 0
        while state['qready'] and state['k'] < 32 and arrived(('K', state['k'], 1)) and n < burst:
            do_k(state['k']); state['k'] += 1; n += 1
            if state['k'] == 32: softmax(); state['pready'] = True; return
        while state['pready'] and state['v'] < 32 and arrived(('V', state['v'], 1)) and n < burst:
            do_v(state['v']); state['v'] += 1; n += 1
        if not state['cnt'] and arrived('CNT'):
            with locked(): cnt_check()
            state['cnt'] = True
        elif state['cnt'] and not state['cs'] and arrived(('F', 7, 1)):
            colsum(); state['cs'] = True
    while P['pos'] < len(order):
        ok = try_issue()
        for pp in list(pstamps):
            if P['pos'] >= pp: stamp(f'p{pp}'); pstamps.remove(pp)
        auto['cnt'] = 0
        lag = P['pos'] - 1 - RP
        if not ok:
            nxt = [t for t in vm if isinstance(t, tuple) and t[2] == 1]
            before = (state['q'], state['k'], state['v'])
            consume()
            if before == (state['q'], state['k'], state['v']):
                forced.append(order[P['pos']])
                waitfor(nxt[0]); consume()
            continue
        if lag >= 0:
            t, u = order[lag]
            waitfor((t, u, 1))
        consume()
    auto['on'] = False
    assert state['pready'] and state['cnt'] and state['cs'], state
    stamp('allissued')
    free = [p for p in range(NP) if ringuse.get(p) is None]
    GA = None
    for s0 in range(NP - 5):
        if all(p in free for p in range(s0, s0 + 6)): GA = RING + 8 * s0; break
    assert GA is not None, (free, state)
    GB = GA + 32
    GZ = GA + 40
    def hint_load():
        a(f's_load_dwordx8 s[{HS}:{HS+7}], s[12:13], {O_H} glc')
    def hint_store():
        if opt.get('nohint'): return
        a('s_mov_b32 exec_hi, 0' if NH == 32 else f's_mov_b64 exec, {(1 << NH) - 1:#x}')
        issue('HS', f'buffer_store_byte {T[9]}, {VHO}, {srd(SSL)}, {sHO} offen offset:{O_H} sc1')
        a('s_mov_b64 exec, -1')
    hpos = opt.get('hpos', 4)
    a(f's_mov_b32 {sPEND}, 0xff')
    a(f's_mov_b32 {sIT}, 0')
    a(f'v_lshlrev_b32 {T[8]}, 3, {VG}')
    a(f'v_lshl_add_u32 {T[8]}, {VC}, 5, {T[8]}')
    a(f'v_mov_b32 {T[9]}, 0')
    VZR = VV
    a(f'v_lshlrev_b32 {VZR}, 9, {VG}')
    a(f'v_lshl_add_u32 {VZR}, {VC}, 4, {VZR}')
    zero_acc(GB + 4)
    a(f'v_lshlrev_b32 {B1R}, 16, {B1R}')
    if opt.get('mkb'):
        a(f'v_lshlrev_b32 {T[0]}, 2, v0')
        a(f'v_mov_b32 {T[1]}, -1')
        issue('MKB', f'buffer_store_dword {T[1]}, {T[0]}, {srd(SSL)}, {sSLOT} offen offset:{O_B} sc1')
    LW = opt.get('lw', 8)
    while state['v'] < 32:
        while late and ('V', 31, 1) in vm:
            if len(vm) + 2 <= LW + 2 - 2 + 0 or len(vm) <= LW - 2:
                issue_pair(late.pop(0))
            else:
                break
        nxt = vm[1] if len(vm) > 1 else vm[0]
        if nxt[0] != 'V' and arrived(('V', state['v'], 1)) is False:
            waitfor(nxt); continue
        do_v(state['v'], wait=True); state['v'] += 1
    stamp('pvdone')
    if opt.get('stopV'): a('s_branch L_fin')
    a('s_mov_b32 exec_hi, 0')
    a(f'ds_write_b128 {VLDS}, {acc} offset:{L_OP}')
    a('s_mov_b32 exec_hi, -1')
    lmode = opt.get('lmode', 0)
    if lmode == 0:
        while late: issue_pair(late.pop(0))
    a('s_waitcnt lgkmcnt(0)')
    a('s_barrier')
    stamp('obar')
    for p in range(4):
        a(f'ds_read_b64 {pr(T[2*p])}, {T[8]} offset:{L_OP + p*512}')
    if lmode == 1:
        while late: issue_pair(late.pop(0))
    if hpos == 0: hint_store()
    zero_acc()
    a('s_waitcnt lgkmcnt(0)')
    hint_load()
    a(f'v_pk_add_f32 {pr(T[0])}, {pr(T[0])}, {pr(T[2])}')
    a(f'v_pk_add_f32 {pr(T[4])}, {pr(T[4])}, {pr(T[6])}')
    a(f'v_pk_add_f32 {pr(T[0])}, {pr(T[0])}, {pr(T[4])}')
    PK = T[8]
    a(f'v_cvt_pk_bf16_f32 {PK}, {T[0]}, {T[1]}')
    A = build4(PK, 0)
    for k in range(16):
        An = build4(PK, k + 1) if k + 1 < 16 else None
        waitfor(('O', k, 1))
        smf(A, f'a[{AQ+8*k}:{AQ+8*k+7}]'); A = An
        if hpos > 0 and k + 1 == hpos: hint_store()
    waitfor('MKB')
    vm.clear()
    if not opt.get('nopub'): publish(VPUB, sSLOT, 0)
    while late: issue_pair(late.pop(0))
    vm.clear()
    stamp('pubA')
    if opt.get('stopA'): a('s_branch L_fin')
    def ld(u):
        b = GA + 4 * u
        a(f's_mov_b32 {sO}, {u*SS}')
        a(f'buffer_load_dwordx4 v[{b}:{b+3}], {VGA}, {srd(SSL)}, {sO} offen sc1')
    first = True
    a('L_hintA:')
    a('s_waitcnt lgkmcnt(0)')
    for hi in range(2):
        a(f's_and_b32 {sT1}, {sPEND}, {0xf << (4*hi)}')
        a(f's_cbranch_scc0 L_ha_h{hi}')
        for u in range(4 * hi, 4 * hi + 4):
            a(f's_bitcmp0_b32 {sPEND}, {u}')
            a(f's_cselect_b32 {sT0}, 1, s{HS+u}')
            a(f's_cmp_lg_u32 {sT0}, 0')
            a(f's_cbranch_scc1 L_ha{u}')
            a(f's_bitset0_b32 {sPEND}, {u}')
            ld(u)
            a(f'L_ha{u}:')
        a(f'L_ha_h{hi}:')
    a(f's_cmp_eq_u32 {sPEND}, 0')
    a('s_cbranch_scc1 L_preA')
    if opt.get('sleepA'): a(f's_sleep {opt["sleepA"]}')
    hint_load()
    a(f's_add_u32 {sIT}, {sIT}, 1')
    a(f's_cmp_le_u32 {sIT}, 0x2000')
    a('s_cbranch_scc1 L_hintA')
    a('s_waitcnt lgkmcnt(0)')
    a('L_slowA:')
    for u in range(8): ld(u)
    a('L_preA:')
    Rz = [f'v{GZ+e}' for e in range(4)]
    for k in range(2):
        a(f'ds_read_b128 v[{GZ+4*k}:{GZ+4*k+3}], {VZR} offset:{L_CP + k*256}')
    zero_acc()
    a('s_waitcnt lgkmcnt(0)')
    for e in (0, 2): a(f'v_pk_add_f32 v[{GZ+e}:{GZ+e+1}], v[{GZ+e}:{GZ+e+1}], v[{GZ+4+e}:{GZ+5+e}]')
    rs4(Rz)
    a(f'v_mov_b32 {CS}, {Rz[0]}')
    a(f'v_mov_b32 {T[7]}, 0x3f803f80')
    a('s_waitcnt vmcnt(0)')
    for p in range(4):
        smf(AI, f'v[{GA+8*p}:{GA+8*p+7}]', acc, IDX2)
    a(f'v_cmp_u_f32 vcc, v{ACC}, v{ACC+1}')
    a(f'v_pk_add_f32 {pr(T[0])}, {pr(X0)}, v[{ACC}:{ACC+1}]')
    a('s_cbranch_vccz L_pollA_done')
    a(f'v_max3_u32 {T[4]}, v{GA}, v{GA+1}, v{GA+2}')
    for k in range(3, 31, 2):
        a(f'v_max3_u32 {T[4]}, {T[4]}, v{GA+k}, v{GA+k+1}')
    a(f'v_max_u32 {T[4]}, {T[4]}, v{GA+31}')
    a(f'v_cmp_eq_u32 vcc, -1, {T[4]}')
    a('s_cbranch_vccz L_pollA_done')
    a(f's_add_u32 {sIT}, {sIT}, 1')
    a(f's_cmp_le_u32 {sIT}, 0x40000')
    a('s_cbranch_scc1 L_slowA')
    a('L_pollA_done:')
    stamp('pollA')
    a(f'v_cvt_pk_bf16_f32 {PK}, {T[0]}, {T[1]}')
    zero_acc()
    S1, S2 = T[2], T[3]
    fill = [f'v_dot2_f32_bf16 {S1}, {PK}, {T[7]}, 0', f'v_dot2_f32_bf16 {S2}, {PK}, {PK}, 0']
    fill += wave_reduce_ops('v_add_f32', [S1, S2], [])
    fill += [f'ds_write_b32 {VHL}, {PK} offset:{L_H}', f'v_lshlrev_b32 {T[4]}, 3, {VT}']
    A = build8(PK, 0, fill)
    for k in range(8):
        An = build8(PK, k + 1, fill) if k + 1 < 8 else None
        smf(A, f'a[{AW1+8*k}:{AW1+8*k+7}]'); A = An
    assert not fill, fill
    a('s_mov_b32 exec_lo, 0')
    a('s_mov_b32 exec_hi, 0x80000000')
    a(f'ds_write_b64 {T[4]}, {pr(S1)} offset:{L_ST}')
    a('s_mov_b32 exec_lo, 0x00ff00ff')
    a('s_mov_b32 exec_hi, 0xff00ff00')
    a(f'ds_write_b128 {VZW}, {acc} offset:{L_ZP}')
    a('s_mov_b64 exec, -1')
    a('s_waitcnt lgkmcnt(0)')
    a('s_barrier')
    stamp('zbar')
    a(f'ds_read_b128 {pr(T[0], 4)}, {T[9]} offset:{L_ST}')
    a(f'ds_read_b128 {pr(T[4], 4)}, {T[9]} offset:{L_ST + 16}')
    for k in range(2):
        a(f'ds_read_b128 v[{GZ+4*k}:{GZ+4*k+3}], {VZR} offset:{L_ZP + k*256}')
    zero_acc()
    a('s_waitcnt lgkmcnt(0)' if stamps else 's_waitcnt lgkmcnt(2)')
    a(f'v_pk_add_f32 {pr(T[0])}, {pr(T[0])}, {pr(T[2])}')
    a(f'v_pk_add_f32 {pr(T[4])}, {pr(T[4])}, {pr(T[6])}')
    a(f'v_pk_add_f32 {pr(T[0])}, {pr(T[0])}, {pr(T[4])}')
    a(f'v_mul_f32 {T[0]}, {f2u(1.0/512)}, {T[0]}')
    a(f'v_mov_b32 {T[2]}, {f2u(1e-5)}')
    a(f'v_mul_f32 {T[1]}, {f2u(1.0/512)}, {T[1]}')
    a('s_waitcnt lgkmcnt(0)')
    for e in (0, 2): a(f'v_pk_add_f32 v[{GZ+e}:{GZ+e+1}], v[{GZ+e}:{GZ+e+1}], v[{GZ+4+e}:{GZ+5+e}]')
    a(f'v_fma_f32 {T[1]}, -{T[0]}, {T[0]}, {T[1]}')
    a(f'v_max_f32 {T[1]}, 0, {T[1]}')
    rs4(Rz, [f'v_add_f32 {T[1]}, {T[1]}, {T[2]}', f'v_rsq_f32 {T[1]}, {T[1]}'])
    Z = T[3]
    KK = -2.0 * 0.7978845608028654 * LOG2E
    a(f'v_fma_f32 {Z}, -{T[0]}, {CS}, {Rz[0]}')
    a(f'v_mov_b32 {T[2]}, {f2u(KK)}')
    a(f'v_fma_f32 {Z}, {Z}, {T[1]}, {B1R}')
    a(f'v_mul_f32 {T[1]}, {Z}, {Z}')
    a(f'v_fmac_f32 {T[2]}, {f2u(KK * 0.044715)}, {T[1]}')
    a(f'v_mul_f32 {T[2]}, {T[2]}, {Z}')
    a(f'v_exp_f32 {T[2]}, {T[2]}')
    a(f's_lshl_b32 {sT0}, {sH}, 5')
    a(f'v_add_f32 {T[2]}, 1.0, {T[2]}')
    a(f'v_rcp_f32 {T[2]}, {T[2]}')
    a(f'v_mul_f32 {Z}, {Z}, {T[2]}')
    a(f'v_mov_b32_dpp {T[1]}, {Z} row_shl:{NU} {DPPF}')
    a(f'v_cvt_pk_bf16_f32 {PK}, {Z}, {T[1]}')
    A = build4(PK, 0)
    for k in range(NU):
        An = build4(PK, k + 1) if k + 1 < NU else None
        smf(A, f'a[{AW2+8*k}:{AW2+8*k+7}]'); A = An
    publish(VPB, sT0, O_B)
    stamp('pubB')
    a(f's_cmp_lg_u32 {sW}, 0')
    a('s_cbranch_scc1 L_fin' if stamps else 's_cbranch_scc1 L_end')
    a(f'ds_read_b32 {T[6]}, {VOUT} offset:{L_H}')
    a(f's_lshl_b32 {sT2}, {sB}, 10')
    a(f'v_add_u32 {VOUT}, {sT2}, {VOUT}')
    a(f's_mov_b32 {sIT}, 0')
    a(f'v_lshlrev_b32 {T[2]}, 16, {B2R}')
    a(f'v_and_b32 {T[3]}, 0xffff0000, {B2R}')
    a('s_waitcnt lgkmcnt(0)')
    a(f'v_lshlrev_b32 {T[4]}, 16, {T[6]}')
    a(f'v_and_b32 {T[5]}, 0xffff0000, {T[6]}')
    a(f'v_pk_add_f32 {pr(T[2])}, {pr(T[2])}, {pr(T[4])}')
    if opt.get('dB', 8): a(f's_sleep {opt.get("dB", 8)}')
    a('L_pollB:')
    a(f'buffer_load_dwordx4 v[{GB}:{GB+3}], {VGB}, {srd(SSL)}, {sSLOT} offen offset:{O_B} sc1')
    zero_acc()
    a('s_waitcnt vmcnt(0)')
    smf(AI, f'v[{GB}:{GB+7}]', acc, IDX2)
    a(f'v_max3_u32 {T[4]}, v{GB}, v{GB+1}, v{GB+2}')
    a(f'v_max_u32 {T[4]}, {T[4]}, v{GB+3}')
    a(f'v_cmp_eq_u32 vcc, -1, {T[4]}')
    a('s_cbranch_vccz L_pollB_done')
    a(f's_add_u32 {sIT}, {sIT}, 1')
    a(f's_cmp_le_u32 {sIT}, 0x40000')
    a('s_nop 4')
    a('s_cbranch_scc1 L_pollB')
    a('L_pollB_done:')
    stamp('pollB')
    a('s_nop 3')
    for n in (8, 4, 2):
        for e in range(2): a(f'v_add_f32_dpp v{ACC+e}, v{ACC+e}, v{ACC+e} row_ror:{n} {DPPF}')
    a(f'v_pk_add_f32 v[{ACC}:{ACC+1}], v[{ACC}:{ACC+1}], {pr(T[2])}')
    a('s_mov_b32 exec_lo, 0x00030003')
    a('s_mov_b32 exec_hi, 0x00030003')
    a(f'v_cvt_pk_bf16_f32 {T[0]}, v{ACC}, v{ACC+1}')
    a(f'global_store_dword {VOUT}, {T[0]}, s[24:25]')
    if stamps:
        a('s_waitcnt vmcnt(0)')
        stamp('end')
        a('L_fin:')
        a('s_waitcnt lgkmcnt(0)')
        a('s_mov_b64 exec, 1')
        if 'enc' in opt:
            k = opt['enc']; F = opt.get('encf', 8)
            a(f'v_mov_b32 {T[8]}, 0')
            a(f's_not_b32 {sT0}, s{STB}')
            a(f'v_mov_b32 {T[0]}, {sT0}')
            a(f'global_atomic_umax {T[8]}, {T[0]}, s[26:27] offset:4 sc1')
            if stnames[k] in ('end', 'pollB'):
                a(f's_cmp_lg_u32 {sW}, 0')
                a('s_cbranch_scc1 L_end')
            a(f'v_mov_b32 {T[1]}, s{STB+2*k}')
            a(f'global_atomic_umax {T[8]}, {T[1]}, s[26:27] offset:132 sc1')
            a(f's_or_b32 {sT0}, s2, {sW}')
            a(f's_cmp_lg_u32 {sT0}, 0')
            a('s_cbranch_scc1 L_end')
            a(f's_mov_b32 {sT2}, 6000')
            a(f's_mov_b32 {sT3}, 0')
            a('L_dspin:')
            a('s_memrealtime s[98:99]')
            a('s_waitcnt lgkmcnt(0)')
            a(f's_sub_u32 s98, s98, s{STB}')
            a(f's_cmp_lt_u32 s98, {sT2}')
            a('s_cbranch_scc1 L_dspin')
            a(f's_cmp_lg_u32 {sT3}, 0')
            a('s_cbranch_scc1 L_end')
            a(f'global_load_dword {T[0]}, {T[8]}, s[26:27] offset:4 sc1')
            a(f'global_load_dword {T[1]}, {T[8]}, s[26:27] offset:132 sc1')
            a('s_waitcnt vmcnt(0)')
            a(f'v_readfirstlane_b32 {sT0}, {T[0]}')
            a(f'v_readfirstlane_b32 {sT1}, {T[1]}')
            a(f's_not_b32 {sT0}, {sT0}')
            a(f's_sub_u32 {sT1}, {sT1}, {sT0}')
            a(f's_min_u32 {sT1}, {sT1}, 6000')
            a(f's_mul_i32 {sT1}, {sT1}, {F}')
            a(f's_add_u32 {sT2}, {sT1}, 6200')
            a(f's_mov_b32 {sT3}, 1')
            a('s_branch L_dspin')
        a('s_add_u32 s28, s28, 0x20000000')
        a('s_addc_u32 s29, s29, 0')
        a(f's_lshl_b32 {sT0}, s2, 2')
        a(f's_add_u32 {sT0}, {sT0}, {sW}')
        a(f's_mul_i32 {sT0}, {sT0}, {nst[0]*8}')
        a(f'v_mov_b32 {T[8]}, {sT0}')
        for k in range(nst[0]):
            a(f'v_mov_b32 v{RING+2*k}, s{STB+2*k}')
            a(f'v_mov_b32 v{RING+2*k+1}, s{STB+2*k+1}')
            a(f'global_store_dwordx2 {T[8]}, v[{RING+2*k}:{RING+2*k+1}], s[28:29] offset:{8*k}')
    a('L_end:')
    a('s_endpgm')
    a('.section .rodata,"a"')
    a('.p2align 6')
    a(f'.amdhsa_kernel {NAME}_kernel')
    a(f'.amdhsa_next_free_vgpr {448 + 8*NU}')
    a('.amdhsa_next_free_sgpr 102')
    a('.amdhsa_accum_offset 256')
    a('.amdhsa_group_segment_fixed_size 0')
    a('.amdhsa_kernarg_size 104')
    a('.amdhsa_user_sgpr_count 2')
    a('.amdhsa_user_sgpr_kernarg_segment_ptr 1')
    a('.amdhsa_system_sgpr_workgroup_id_x 1')
    a('.amdhsa_float_denorm_mode_32 3')
    a('.end_amdhsa_kernel')
    txt = a0.finish()
    if forced: print('FORCED WAITS before', forced)
    return HEADER + txt, stnames, a0.npad, order

if __name__ == '__main__':
    name = sys.argv[1]; opt = json.loads(sys.argv[2]) if len(sys.argv) > 2 else {}
    st = sys.argv[3].split(',') if len(sys.argv) > 3 else False
    t, n, pad, order = gen(st, opt)
    open(name, 'w').write(t)
    print(name, 'stamps', n, 'pad', pad)
    if opt.get('show'): print(' '.join(f'{t}{u}' for t, u in order))
```

```python
import sys, struct, os, json
from asmlib import Asm
NAME = 'sequential_preLN__sliding_block_cached__dense_activation_gelu__decode'
def f2u(x): return '0x%08x' % struct.unpack('<I', struct.pack('<f', x))[0]
REF = 'cdna_kernels/' + NAME + '.s.ref'
HEADER = open(REF).read().split('; Override launch')[0] if os.path.exists(REF) else ''
LOG2E = 1.4426950408889634

def merge(main, extra):
    out = []; n = len(main); m = len(extra); j = 0
    for i, o in enumerate(main):
        out.append(o)
        while j < m and (i + 1) * m >= (j + 1) * n:
            out.append(extra[j]); j += 1
    return out + extra[j:]

def gen(stamps=False, opt=None):
    opt = opt or {}
    a0 = Asm()
    auto = dict(on=False, cnt=0, n=opt.get('yn', 60), lock=0)
    def a(text):
        a0(text)
        if auto['on'] and not auto['lock']:
            t = text.strip()
            if t.startswith(('s_mov_b32 exec', 's_mov_b64 exec', 's_cmp', 's_cbranch')):
                raise RuntimeError('control/exec op in auto region without lock: ' + t)
            if t.startswith(('v_', 'ds_')):
                auto['cnt'] += 3 if '_dpp' in t and 'newbcast' not in t else 1
                if auto['cnt'] >= auto['n']:
                    auto['cnt'] = 0
                    auto['on'] = False
                    try_issue()
                    auto['on'] = True
    class locked:
        def __enter__(self): auto['lock'] += 1
        def __exit__(self, *x): auto['lock'] -= 1
    R = opt.get('R', 16); RP = R // 2
    NU = opt.get('nu', 6)
    DPPF = 'row_mask:0xf bank_mask:0xf'
    SS = 2176; O_B = 1152; O_H = 1024
    BIG = 0x1000000
    RING = 64; NP = 24
    def rp(p): return RING + 8 * (p % NP)
    AQ, AW1, AW2 = 0, 128, 192
    VK, VV, VWQ, VWO, VW1, VW2, VPUB, VGA, VGB = 'v1', 'v2', 'v3', 'v4', 'v5', 'v6', 'v7', 'v8', 'v9'
    VL, VG, VC, VT = 'v10', 'v11', 'v12', 'v13'
    MA = ['v14', 'v15', 'v16', 'v17']
    MB = ['v18', 'v19', 'v20', 'v21']
    IDX, XR, B1R, B2R, CNT, VLDS, VHL, E7 = 'v22', 'v23', 'v24', 'v25', 'v26', 'v27', 'v28', 'v29'
    Q = ['v30', 'v31', 'v32', 'v33']
    X0, X1 = 'v34', 'v35'
    AI = 30; IDX2 = 'v3'; VPB = 'v1'; VHO = 'v23'; CS = 'v26'
    ACC = 36
    A0, A1 = 40, 44
    C = ['v48', 'v49', 'v50', 'v51']
    VOUT, VZW = 'v50', 'v51'
    T = [f'v{i}' for i in range(52, 64)]
    acc = f'v[{ACC}:{ACC+3}]'
    def pr(r, n=2): return f'v[{r[1:]}:{int(r[1:])+n-1}]'
    sW, sB, sH, sJ, sHO = 's3', 's30', 's31', 's14', 's15'
    SK, SV, SWQ, SWO, SW1, SW2, SSL, SB1 = 32, 36, 40, 44, 48, 52, 56, 60
    def srd(n): return f's[{n}:{n+3}]'
    sO, sQb, sT0, sT1, sT2, sT3 = 's64', 's65', 's66', 's67', 's68', 's69'
    sSLOT, sPEND, sIT, sW1b, sW2b, sOb = 's70', 's71', 's72', 's73', 's74', 's75'
    sMB0, sMB1 = 's[76:77]', 's[78:79]'
    HS = 4
    STB = 80
    nst = [0]; stnames = []
    def stamp(name):
        if stamps and name in stamps:
            stnames.append(name)
            a0(f's_memrealtime s[{STB+2*nst[0]}:{STB+2*nst[0]+1}]'); nst[0] += 1
        if stamps and (name + '_c') in stamps:
            stnames.append(name + '_c')
            a0(f's_memtime s[{STB+2*nst[0]}:{STB+2*nst[0]+1}]'); nst[0] += 1
    L_QP, L_OP, L_SM, L_ST, L_ZP, L_CP, L_H = 0, 2048, 4096, 4160, 4352, 6400, 8448
    LDS = 9472

    def wave_reduce_ops(op, xs, sd):
        ops = []
        for n in (8, 4, 2, 1):
            for x in xs: ops.append(f'{op}_dpp {x}, {x}, {x} row_ror:{n} {DPPF}')
        for x in xs: ops.append(f'{op}_dpp {x}, {x}, {x} row_bcast:15 row_mask:0xa bank_mask:0xf')
        for x in xs: ops.append(f'{op}_dpp {x}, {x}, {x} row_bcast:31 row_mask:0xc bank_mask:0xf')
        for x, s in zip(xs, sd): ops.append(f'v_readlane_b32 {s}, {x}, 63')
        return ops
    def wave_reduce(op, xs, sd):
        for o in wave_reduce_ops(op, xs, sd): a(o)
    def bf16r(dst, src):
        a(f'v_cvt_pk_bf16_f32 {dst}, {src}, {src}')
        a(f'v_and_b32 {dst}, 0xffff0000, {dst}')
    def bf16r2(d0, d1, s0, s1):
        a(f'v_cvt_pk_bf16_f32 {d1}, {s0}, {s1}')
        a(f'v_lshlrev_b32 {d0}, 16, {d1}')
        a(f'v_and_b32 {d1}, 0xffff0000, {d1}')
    kk = [0]
    def build4(src, lane):
        A = A0 if kk[0] % 2 == 0 else A1; kk[0] += 1
        for r in range(4):
            a(f'v_and_b32_dpp v{A+r}, {src}, {MA[r]} row_newbcast:{lane} {DPPF}')
        return A
    def build8(src, lane, filler=None):
        A = A0 if kk[0] % 2 == 0 else A1
        x = T[10 + kk[0] % 2]; kk[0] += 1
        a(f'v_mov_b32_dpp {x}, {src} row_newbcast:{lane} row_mask:0xf bank_mask:0x3')
        if filler:
            for _ in range(2):
                if filler: a(filler.pop(0))
        a(f'v_mov_b32_dpp {x}, {src} row_newbcast:{lane+8} row_mask:0xf bank_mask:0xc')
        for r in range(4):
            a(f'v_and_b32 v{A+r}, {x}, {MB[r]}')
        return A
    def smf(A, B, D=acc, idx=IDX):
        a(f'v_smfmac_f32_16x16x64_bf16 {D}, v[{A}:{A+3}], {B}, {idx}')
    def zero_acc(base=ACC):
        for r in range(4): a(f'v_mov_b32 v{base+r}, 0')
    def rs4(Rr, filler=None):
        def f():
            if filler: a(filler.pop(0))
        a(f'v_permlane32_swap_b32 {Rr[0]}, {Rr[2]}')
        a(f'v_permlane32_swap_b32 {Rr[1]}, {Rr[3]}')
        a(f'v_add_f32 {Rr[0]}, {Rr[0]}, {Rr[2]}')
        a(f'v_add_f32 {Rr[1]}, {Rr[1]}, {Rr[3]}')
        f(); f()
        a(f'v_permlane16_swap_b32 {Rr[0]}, {Rr[1]}')
        a(f'v_add_f32 {Rr[0]}, {Rr[0]}, {Rr[1]}')
    def publish(voff, soff, off):
        a('s_mov_b32 exec_hi, 0')
        a(f'v_cvt_pk_bf16_f32 {T[0]}, v{ACC}, v{ACC+1}')
        a(f'v_cvt_pk_bf16_f32 {T[1]}, v{ACC+2}, v{ACC+3}')
        a(f'v_min_u32 {T[0]}, -2, {T[0]}')
        a(f'v_min_u32 {T[1]}, -2, {T[1]}')
        a(f'buffer_store_dwordx2 {pr(T[0])}, {voff}, {srd(SSL)}, {soff} offen offset:{off} sc1')
        a('s_mov_b32 exec_hi, -1')

    a(f'; @launch grid=(256,1,1) block=(256,1,1) lds={LDS}')
    a('.amdgcn_target "amdgcn-amd-amdhsa--gfx950"')
    a('.text')
    a(f'.globl {NAME}_kernel')
    a('.p2align 8')
    a(f'.type {NAME}_kernel,@function')
    a(f'{NAME}_kernel:')
    fast = opt.get('fast', 0)
    a('s_load_dwordx8 s[4:11], s[0:1], 0')
    pro = opt.get('pro', 0)
    if pro == 1: a('s_load_dwordx2 s[28:29], s[0:1], 96')
    if not fast and not pro:
        a('s_load_dwordx8 s[12:19], s[0:1], 32')
        a('s_load_dwordx8 s[20:27], s[0:1], 64')
        a('s_load_dwordx2 s[28:29], s[0:1], 96')
    a('s_cmp_ge_u32 s2, 256')
    a('s_cbranch_scc1 L_end')
    stamp('start')
    if fast:
        a(f'v_lshrrev_b32 {VK}, 4, v0')
        a(f'v_and_b32 {VC}, 15, v0')
        a(f's_lshl_b32 {sT1}, s2, 20')
        a(f'v_lshlrev_b32 {VK}, 9, {VK}')
        a(f's_or_b32 {sT1}, {sT1}, 0xC0000')
        a(f'v_lshl_add_u32 {VK}, {VC}, 4, {VK}')
        a(f's_mov_b32 s{SK+2}, 0x40000')
        a(f's_mov_b32 s{SK+3}, 0x20000')
        a(f's_movk_i32 {sO}, 0x2000')
        a('s_waitcnt lgkmcnt(0)')
        stamp('ka0')
        a(f's_add_u32 s{SK}, s6, {sT1}')
        a(f's_addc_u32 s{SK+1}, s7, 0')
        for u in range(fast):
            b = RING + 8 * u
            so = '0' if u == 0 else sO
            if u > 1: a(f's_add_u32 {sO}, {sO}, 0x2000')
            a(f'buffer_load_dwordx4 v[{b}:{b+3}], {VK}, {srd(SK)}, {so} offen nt')
            a(f'buffer_load_dwordx4 v[{b+4}:{b+7}], {VK}, {srd(SK)}, {so} offen offset:256 nt')
        a('s_load_dwordx8 s[12:19], s[0:1], 32')
        a('s_load_dwordx8 s[20:27], s[0:1], 64')
        a('s_load_dwordx2 s[28:29], s[0:1], 96')
    a(f'v_lshrrev_b32 {VT}, 6, v0')
    a(f'v_and_b32 {VL}, 63, v0')
    a(f'v_readfirstlane_b32 {sW}, {VT}')
    a(f'v_lshrrev_b32 {VG}, 4, {VL}')
    a(f'v_and_b32 {VC}, 15, v0')
    a(f's_lshr_b32 {sB}, s2, 5')
    a(f's_and_b32 {sH}, s2, 31')
    a(f'v_lshlrev_b32 {VV}, 11, {VT}')
    if not fast:
        a(f'v_lshl_add_u32 {VK}, {VG}, 9, {VV}')
        a(f'v_lshl_add_u32 {VK}, {VC}, 4, {VK}')
    a(f'v_lshl_add_u32 {VV}, {VL}, 4, {VV}')
    a(f'v_lshlrev_b32 {VWQ}, 13, {VG}')
    a(f'v_lshl_add_u32 {VWQ}, {VC}, 4, {VWQ}')
    a(f's_lshl_b32 {sT0}, {sB}, 10')
    a(f'v_lshl_add_u32 {T[2]}, {VL}, 4, {sT0}')
    a(f'v_lshlrev_b32 {T[3]}, 8, {VT}')
    a(f'v_lshl_add_u32 {VGA}, {VC}, 4, {T[3]}')
    a(f'v_lshl_add_u32 {VHL}, {VG}, 2, {VGA}')
    a(f'v_add_u32 {CNT}, {sT0}, {VHL}')
    a(f'v_lshlrev_b32 {B2R}, 4, v0')
    a(f'v_cmp_gt_u32 vcc, {O_B if opt.get("mkb") else SS}, {B2R}')
    a(f'v_mov_b32 {T[0]}, {BIG:#x}')
    for r in range(4): a(f'v_mov_b32 v{A0+r}, -1')
    a(f'v_cndmask_b32 {B2R}, {T[0]}, {B2R}, vcc')
    hmap = opt.get('hmap', 0)
    sHD = 's101' if hmap else sH
    if hmap:
        a(f's_and_b32 {sHD}, {sH}, 7')
        a(f's_lshl_b32 {sHD}, {sHD}, 2')
        a(f's_lshr_b32 {sT1}, {sH}, 3')
        a(f's_add_u32 {sHD}, {sHD}, {sT1}')
        a(f's_and_b32 {sT1}, s2, 0xe0')
        a(f's_add_u32 {sT1}, {sT1}, {sHD}')
        a(f's_lshl_b32 {sT1}, {sT1}, 20')
    else:
        a(f's_lshl_b32 {sT1}, s2, 20')
    a(f's_add_u32 {sT1}, {sT1}, 0xC0000')
    a(f's_mul_i32 {sSLOT}, {sH}, {SS}')
    a(f's_mul_i32 {sT2}, {sB}, {32*SS}')
    a(f's_lshl_b32 {sQb}, {sW}, 20')
    a(f's_lshl_b32 {sT3}, {sHD}, 8')
    a(f's_add_u32 {sQb}, {sQb}, {sT3}')
    SZ = ((SK, 0x40000), (SWQ, 0x400000), (SSL, 32 * SS), (SV, 0x40000), (SWO, 0x400000), (SW1, 512 * 2752), (SW2, 1376 * 1024), (SB1, 2752))
    for n, sz in (SZ[:3] if pro else SZ):
        a(f's_mov_b32 s{n+2}, {sz:#x}')
        a(f's_mov_b32 s{n+3}, 0x20000')
    a('s_waitcnt lgkmcnt(0)')
    stamp('ka')
    if opt.get('stouch', 0) & 4:
        a(f's_lshl_b32 {sT0}, s2, 7')
        a(f's_add_u32 {sT3}, {sT0}, 0x100000')
        a(f's_load_dword s100, s[28:29], {sT3}')
        a(f's_load_dword s100, s[10:11], {sQb}')
        a(f's_load_dword s100, s[4:5], 0')
    a(f's_add_u32 s{SK}, s6, {sT1}')
    a(f's_addc_u32 s{SK+1}, s7, 0')
    a(f's_mov_b32 s{SWQ}, s10')
    a(f's_mov_b32 s{SWQ+1}, s11')
    if pro:
        a('s_load_dwordx8 s[12:19], s[0:1], 32')
        a('s_load_dwordx8 s[20:27], s[0:1], 64')
        if pro == 2: a('s_load_dwordx2 s[28:29], s[0:1], 96')
    if pro != 2:
        a(f's_add_u32 s{SSL}, s28, {sT2}')
        a(f's_addc_u32 s{SSL+1}, s29, 0')

    vm = []; issued = set()
    def issue(tag, text): a0(text); vm.append(tag); issued.add(tag)
    def waitfor(tag):
        if tag not in vm: return
        i = vm.index(tag)
        a0(f's_waitcnt vmcnt({len(vm) - 1 - i})')
        del vm[:i + 1]
    def arrived(tag): return tag in issued and tag not in vm
    ringuse = {}; ringn = [0]; slot_of = {}
    def issue_pair(op):
        t, u = op
        if t in 'KV':
            p = ringn[0]; ringn[0] += 1
            assert ringuse.get(p % NP) is None
            ringuse[p % NP] = op; slot_of[op] = rp(p)
            b = rp(p)
            a0(f's_mov_b32 {sO}, {u*8192}')
            vo, sr, o2 = (VK, SK, 256) if t == 'K' else (VV, SV, 1024)
            pol = opt.get('kpol' if t == 'K' else 'vpol', 'nt')
            issue((t, u, 0), f'buffer_load_dwordx4 v[{b}:{b+3}], {vo}, {srd(sr)}, {sO} offen {pol}')
            issue((t, u, 1), f'buffer_load_dwordx4 v[{b+4}:{b+7}], {vo}, {srd(sr)}, {sO} offen offset:{o2} {pol}')
        else:
            base, vo, sr, sb, offs = {
                'Q': (AQ, VWQ, SWQ, sQb, [(2 * u + L) * 32768 for L in (0, 1)]),
                'O': (AQ, VWO, SWO, sOb, [(2 * u + L) * 4096 for L in (0, 1)]),
                'F': (AW1, VW1, SW1, sW1b, [(2 * u + L) * 11008 for L in (0, 1)]),
                'S': (AW2, VW2, SW2, sW2b, [(2 * u + L) * 2048 for L in (0, 1)]),
            }[t]
            for L in (0, 1):
                b = base + 8 * u + 4 * L
                a0(f's_add_u32 {sO}, {sb}, {offs[L]}')
                issue((t, u, L), f'buffer_load_dwordx4 a[{b}:{b+3}], {vo}, {srd(sr)}, {sO} offen {opt.get("wpol", "nt")}')
    def free_slot(op):
        for k, v in ringuse.items():
            if v == op: ringuse[k] = None

    K = [('K', u) for u in range(32)]; V = [('V', u) for u in range(32)]
    Qo = [('Q', u) for u in range(16)]; Oo = [('O', u) for u in range(16)]
    Fo = [('F', u) for u in range(8)]; So = [('S', u) for u in range(NU)]
    nq = opt.get('nq', 16)
    order = merge(Qo, K[:nq]) if nq < 16 else merge(K[:nq], Qo)
    for i in range(max(fast, opt.get('kfirst', 1))):
        order.remove(K[i]); order.insert(i, K[i])
    rest = K[nq:] + V
    ns_late = opt.get('slate', 0)
    no = len(rest) - opt.get('tailv', 2)
    no_late = opt.get('olate', 0)
    Oe = Oo[:16 - no_late]; Se = So[:NU - ns_late]
    ford = opt.get('ford', 0)
    if ford == 0: ex = Fo + Se + Oe
    elif ford == 1: ex = Fo[:3] + merge(Oe[:-3], Fo[3:] + Se) + Oe[-3:]
    elif ford == 2: ex = Fo[:3] + Oe[:-3] + Fo[3:] + Se + Oe[-3:]
    if ford == 3:
        order = merge(K[:nq], merge(Qo, Fo)); order.remove(K[0]); order.insert(0, K[0])
        ex = Se + Oe
        k0 = 5
        order += rest[:k0] + merge(rest[k0:no], ex) + rest[no:]
    else:
        order += merge(rest[:no], ex) + rest[no:]
    NQ = opt.get('qfake', 16)
    if NQ < 16:
        kv = K + V
        order = [kv[0]] + Qo[:NQ] + merge(kv[1:62], Fo + Se + Oe) + kv[62:]
    late = Oo[16 - no_late:] + So[NU - ns_late:]

    P = dict(pos=0, setup=False)
    state = dict(q=0, k=0, v=0, qready=False, pready=False, cs=False, cnt=False)
    def can_issue():
        if P['pos'] >= len(order): return False
        op = order[P['pos']]
        if len(vm) + 2 > 58: return False
        if op[0] in 'VOFS' and not P['setup']: return False
        if op[0] in 'KV' and ringuse.get(ringn[0] % NP) is not None: return False
        if op[0] == 'O' and state['q'] <= op[1]: return False
        return True
    def try_issue():
        if can_issue():
            issue_pair(order[P['pos']]); P['pos'] += 1
            bn = opt.get('bn', 0)
            if bn and P['pos'] >= opt.get('bfrom', 14) and (len(order) - P['pos']) % bn == 0: a0('s_barrier')
            return True
        return False
    def marker():
        if pro == 2:
            a('s_waitcnt lgkmcnt(0)')
            a(f's_add_u32 s{SSL}, s28, {sT2}')
            a(f's_addc_u32 s{SSL+1}, s29, 0')
        if not opt.get('nomk'): issue('MK', f'buffer_store_dwordx4 v[{A0}:{A0+3}], {B2R}, {srd(SSL)}, {sSLOT} offen {opt.get("mkf", "sc1")}')
    for u in range(fast):
        op = ('K', u); p = ringn[0]; ringn[0] += 1
        ringuse[p % NP] = op; slot_of[op] = rp(p)
        for L in (0, 1): vm.append(('K', u, L)); issued.add(('K', u, L))
        P['pos'] += 1
    mkpos = opt.get('mkpos', 0)
    if opt.get('stouch', 0) & 2: a(f's_buffer_load_dword s100, {srd(SSL)}, {sSLOT}')
    xpos = opt.get('xpos', 0)
    def xloads():
        issue('X8', f'global_load_dwordx4 {pr(T[4], 4)}, {T[2]}, s[4:5]')
        issue('XR', f'global_load_dword {XR}, {CNT}, s[4:5]')
    if mkpos == 0: marker()
    if xpos == 0: xloads()
    for i in range(opt.get('n0', 6) - fast):
        try_issue()
        stamp(f'i{i}')
        if xpos == i + 1: xloads()
        if mkpos == i + 1: marker()
    if opt.get('diagk'):
        waitfor(('K', 0, 0)); stamp('k0')
    stamp('issued')
    if opt.get('diagx'):
        waitfor('XR'); stamp('xr')
        waitfor('MK'); stamp('mk')
    if pro:
        for n, sz in SZ[3:]:
            a(f's_mov_b32 s{n+2}, {sz:#x}')
            a(f's_mov_b32 s{n+3}, 0x20000')
        a('s_waitcnt lgkmcnt(0)')
    a(f's_add_u32 s{SV}, s8, {sT1}')
    a(f's_addc_u32 s{SV+1}, s9, 0')
    for n, p in ((SWO, 12), (SW1, 16), (SW2, 20), (SB1, 18)):
        a(f's_mov_b32 s{n}, s{p}')
        a(f's_mov_b32 s{n+1}, s{p+1}')
    a('s_mov_b32 s76, 0xaaaaaaaa'); a('s_mov_b32 s77, 0xaaaaaaaa')
    a('s_mov_b32 s78, 0xcccccccc'); a('s_mov_b32 s79, 0xcccccccc')
    a(f's_lshl_b32 {sOb}, {sHD}, 17')
    a(f's_and_b32 {sJ}, {sH}, 7')
    a(f's_lshl_b32 {sJ}, {sJ}, 2')
    a(f's_lshr_b32 {sT0}, {sH}, 3')
    a(f's_add_u32 {sJ}, {sJ}, {sT0}')
    a(f's_cmp_eq_u32 {sW}, 0')
    a(f's_cselect_b32 {sHO}, {sJ}, {BIG:#x}')
    if opt.get('prio'):
        tab = 0
        for rank, g in enumerate(opt['prio']): tab |= rank << (4 * g)
        a(f's_and_b32 {sJ}, {sJ}, 0x1c')
        a(f's_lshr_b32 {sJ}, {tab:#x}, {sJ}')
        a(f's_and_b32 {sJ}, {sJ}, 7')
        a(f's_lshl_b32 {sJ}, {sJ}, 2')
        a(f's_add_u32 {sJ}, {sJ}, {sT0}')
    a(f's_mul_i32 {sW1b}, {sJ}, {16*NU}')
    a(f's_mul_i32 {sW2b}, {sJ}, {8*NU*1024}')
    NH = opt.get('nh', 32)
    a(f's_and_b32 {sT0}, {sH}, {NH-1}')
    a(f's_mul_i32 {sT0}, {sT0}, {SS}')
    a(f's_add_u32 s12, s{SSL}, {sT0}')
    a(f's_addc_u32 s13, s{SSL+1}, 0')
    if opt.get('stouch', 0) & 1:
        a(f's_buffer_load_dword s100, {srd(SV)}, 0')
        a(f's_buffer_load_dword s100, {srd(SWO)}, {sOb}')
        a(f's_buffer_load_dword s100, {srd(SW2)}, {sW2b}')
        a(f's_buffer_load_dword s100, {srd(SW1)}, {sW1b}')
        a(f's_add_u32 {sT0}, {sW1b}, {511*2752}')
        a(f's_buffer_load_dword s100, {srd(SW1)}, {sT0}')
        a(f's_buffer_load_dword s100, {srd(SB1)}, 0')
        a(f's_load_dword s100, s[22:23], 0')
        a(f's_load_dword s100, s[24:25], 0')
        a(f's_load_dword s100, s[26:27], 0')
    HALF, GH, GL = T[2], T[0], T[1]
    a(f'v_lshrrev_b32 {GH}, 1, {VG}')
    a(f'v_and_b32 {GL}, 1, {VG}')
    a(f'v_and_b32 {E7}, 7, v0')
    a(f'v_bfe_u32 {HALF}, v0, 3, 1')
    a(f'v_and_b32 {IDX}, 3, v0')
    a(f'v_mul_u32_u24 {IDX}, 0x5555, {IDX}')
    a(f'v_mov_b32 {T[8]}, 0xffff')
    a(f'v_mov_b32 {T[9]}, 0xffff0000')
    a(f'v_lshrrev_b32 {T[3]}, 2, {VC}')
    a(f'v_cmp_eq_u32 vcc, 0, {T[3]}')
    a(f'v_cndmask_b32 {MA[0]}, 0, {T[8]}, vcc'); a(f'v_cndmask_b32 {MA[2]}, 0, {T[9]}, vcc')
    a(f'v_cmp_eq_u32 vcc, 1, {T[3]}')
    a(f'v_cndmask_b32 {MA[1]}, 0, {T[8]}, vcc'); a(f'v_cndmask_b32 {MA[3]}, 0, {T[9]}, vcc')
    a(f'v_cmp_gt_u32 vcc, 4, {E7}')
    a(f'v_cndmask_b32 {MB[0]}, 0, {T[8]}, vcc'); a(f'v_cndmask_b32 {MB[2]}, 0, {T[9]}, vcc')
    a(f'v_xor_b32 {MB[1]}, {T[8]}, {MB[0]}'); a(f'v_xor_b32 {MB[3]}, {T[9]}, {MB[2]}')
    a(f'v_lshl_add_u32 {VWO}, {VG}, 10, {VGA}')
    a(f'v_mul_u32_u24 {VW2}, {4*NU}, {GL}')
    a(f'v_add_u32 {VW2}, {VW2}, {GH}')
    a(f'v_lshl_add_u32 {VW2}, {VW2}, 10, {VGA}')
    a(f'v_lshl_add_u32 {VW1}, {HALF}, 6, {VG}')
    a(f'v_lshl_add_u32 {VW1}, {VT}, 7, {VW1}')
    a(f'v_mul_u32_u24 {VW1}, 2752, {VW1}')
    a(f'v_lshl_add_u32 {VW1}, {E7}, 4, {VW1}')
    a(f's_mul_i32 {sT0}, {sJ}, {NU}')
    a(f's_sub_i32 {sT0}, 172, {sT0}')
    a(f's_min_i32 {sT0}, {sT0}, {NU}')
    a(f'v_cmp_gt_i32 vcc, {sT0}, {E7}')
    a(f'v_mov_b32 {T[3]}, 0x7fff0000')
    a(f'v_cndmask_b32 {VW1}, {T[3]}, {VW1}, vcc')
    a(f'v_lshl_add_u32 {VPUB}, {VG}, 3, {VGA}')
    a(f'v_mul_u32_u24 {T[3]}, {8*SS}, {VG}')
    a(f'v_add_u32 {VGA}, {VGA}, {T[3]}')
    a(f'v_lshlrev_b32 {VGB}, 4, {VL}')
    a(f'v_lshlrev_b32 {VLDS}, 1, {VPUB}')
    zero_acc()
    P['setup'] = True
    while P['pos'] < opt.get('n1', 12):
        try_issue()
        if mkpos == P['pos']: marker()
    stamp('n1')
    waitfor('XR')
    stamp('xr2')
    auto['on'] = True
    X = [C[0], C[1], C[2], C[3], T[8], T[9], T[10], T[11]]
    for k in range(4):
        a(f'v_lshlrev_b32 {X[2*k]}, 16, {T[4+k]}')
        a(f'v_and_b32 {X[2*k+1]}, 0xffff0000, {T[4+k]}')
    a(f'v_lshlrev_b32 {X0}, 16, {XR}')
    a(f'v_and_b32 {X1}, 0xffff0000, {XR}')
    a(f'v_add_f32 {T[4]}, {X[0]}, {X[1]}'); a(f'v_add_f32 {T[5]}, {X[2]}, {X[3]}')
    a(f'v_add_f32 {T[6]}, {X[4]}, {X[5]}'); a(f'v_add_f32 {T[7]}, {X[6]}, {X[7]}')
    a(f'v_add_f32 {T[4]}, {T[4]}, {T[5]}'); a(f'v_add_f32 {T[6]}, {T[6]}, {T[7]}')
    a(f'v_add_f32 {T[4]}, {T[4]}, {T[6]}')
    wave_reduce('v_add_f32', [T[4]], [sT0])
    a(f'v_mov_b32 {T[5]}, {f2u(1.0/512)}')
    a(f'v_mul_f32 {T[5]}, {sT0}, {T[5]}')
    for k in range(8): a(f'v_sub_f32 {X[k]}, {X[k]}, {T[5]}')
    a(f'v_mul_f32 {T[4]}, {X[0]}, {X[0]}')
    for k in range(1, 8): a(f'v_fmac_f32 {T[4]}, {X[k]}, {X[k]}')
    wave_reduce('v_add_f32', [T[4]], [sT0])
    a(f'v_mov_b32 {T[6]}, {f2u(1.0/512)}')
    a(f'v_mul_f32 {T[6]}, {sT0}, {T[6]}')
    XN = XR
    mean, var, t0, t1 = T[5], T[6], T[8], T[9]
    bf16r2(mean, var, mean, var)
    a(f'v_add_f32 {var}, {f2u(1e-5)}, {var}')
    a(f'v_sub_f32 {t0}, {X0}, {mean}')
    bf16r(var, var)
    a(f'v_sqrt_f32 {var}, {var}')
    a(f'v_sub_f32 {t1}, {X1}, {mean}')
    bf16r(var, var)
    a(f'v_rcp_f32 {var}, {var}')
    bf16r2(t0, t1, t0, t1)
    a(f'v_mul_f32 {t0}, {t0}, {var}')
    a(f'v_mul_f32 {t1}, {t1}, {var}')
    a(f'v_cvt_pk_bf16_f32 {XN}, {t0}, {t1}')

    U = [[T[0], T[1], T[2], T[3]], [T[4], T[5], T[6], T[7]]]
    TMP = [[T[8], T[9]], [T[10], T[11]]]
    lane_of = {}
    def do_q(u):
        A = build4(XN, u)
        smf(A, f'a[{AQ+8*u}:{AQ+8*u+7}]')
    def q_finish():
        try_issue()
        with locked():
            a('s_mov_b32 exec_hi, 0')
            a(f'ds_write_b128 {VLDS}, {acc} offset:{L_QP}')
            a('s_mov_b32 exec_hi, -1')
        a(f'v_lshlrev_b32 {CNT}, 5, {VC}')
        a('s_waitcnt lgkmcnt(0)')
        a('s_barrier')
        stamp('qbar')
        with locked():
            a(f's_cmp_lg_u32 {sW}, 0')
            a('s_cbranch_scc1 L_nosig')
            a(f's_lshl_b32 {sT0}, {sB}, 5')
            a(f'v_mov_b32 {T[0]}, {sT0}')
            a(f'v_mov_b32 {T[1]}, 1')
            a('s_mov_b64 exec, 1')
            a(f'global_atomic_add {T[0]}, {T[1]}, s[26:27] sc1')
            a('s_mov_b64 exec, -1')
            a('L_nosig:')
        try_issue()
        B0 = 40; d3 = int(T[4][1:])
        for half in range(2):
            for p in range(4):
                d = B0 + 4 * p if p < 3 else d3
                a(f'ds_read_b128 v[{d}:{d+3}], {CNT} offset:{L_QP + p*512 + half*16}')
            a('s_waitcnt lgkmcnt(0)')
            for e in range(4):
                a(f'v_add_f32 v{B0+e}, v{B0+e}, v{B0+4+e}')
                a(f'v_add_f32 v{B0+8+e}, v{B0+8+e}, v{d3+e}')
            for e in range(4): a(f'v_add_f32 v{B0+e}, v{B0+e}, v{B0+8+e}')
            a(f'v_cvt_pk_bf16_f32 {Q[2*half]}, v{B0}, v{B0+1}')
            a(f'v_cvt_pk_bf16_f32 {Q[2*half+1]}, v{B0+2}, v{B0+3}')
        zero_acc()
    def do_k(u):
        b = slot_of[('K', u)]
        i = u % 16
        S = [[U[ch][i // 4], TMP[ch][0], TMP[ch][1], TMP[ch][0]][i % 4] for ch in range(2)]
        for r in range(4):
            for ch in range(2):
                a(f'v_dot2_f32_bf16 {S[ch]}, v{b+4*ch+r}, {Q[r]}, {"0" if r == 0 else S[ch]}')
        free_slot(('K', u))
        if i % 2 == 1:
            for ch in range(2):
                sa = U[ch][i // 4] if i % 4 == 1 else TMP[ch][1]
                a(f'v_add_f32_dpp {sa}, {sa}, {sa} row_ror:8 row_mask:0xf bank_mask:0x3')
            for ch in range(2):
                sa = U[ch][i // 4] if i % 4 == 1 else TMP[ch][1]
                sb = TMP[ch][0]
                a(f'v_add_f32_dpp {sa}, {sb}, {sb} row_ror:8 row_mask:0xf bank_mask:0xc')
        if i % 4 == 3:
            for ch in range(2):
                ta = U[ch][i // 4]
                a(f'v_add_f32_dpp {ta}, {ta}, {ta} row_half_mirror row_mask:0xf bank_mask:0x5')
            for ch in range(2):
                ta, tb = U[ch][i // 4], TMP[ch][1]
                a(f'v_add_f32_dpp {ta}, {tb}, {tb} row_half_mirror row_mask:0xf bank_mask:0xa')
        lane_of[u] = ((i & 1) << 3) | (((i >> 1) & 1) << 2) | ((i >> 2) & 1) | (((i >> 3) & 1) << 1)
        if i == 15:
            for ch in range(2):
                for x in U[ch]: a(f'v_add_f32_dpp {x}, {x}, {x} quad_perm:[1,0,3,2] {DPPF}')
            for ch in range(2):
                a(f'v_cndmask_b32 {U[ch][0]}, {U[ch][0]}, {U[ch][1]}, {sMB0}')
                a(f'v_cndmask_b32 {U[ch][2]}, {U[ch][2]}, {U[ch][3]}, {sMB0}')
            for ch in range(2):
                for x in (U[ch][0], U[ch][2]): a(f'v_add_f32_dpp {x}, {x}, {x} quad_perm:[2,3,0,1] {DPPF}')
            for ch in range(2):
                a(f'v_cndmask_b32 {C[2*(u//16)+ch]}, {U[ch][0]}, {U[ch][2]}, {sMB1}')
    def softmax():
        stamp('qkdone')
        for k in (0, 2): bf16r2(C[k], C[k+1], C[k], C[k+1])
        for k in range(4): a(f'v_mul_f32 {C[k]}, {f2u(128 ** -0.5)}, {C[k]}')
        for k in (0, 2): bf16r2(C[k], C[k+1], C[k], C[k+1])
        a(f'v_max_f32 {T[0]}, {C[0]}, {C[1]}')
        a(f'v_max3_f32 {T[0]}, {T[0]}, {C[2]}, {C[3]}')
        wave_reduce('v_max_f32', [T[0]], [sT0])
        for k in range(4): a(f'v_subrev_f32 {T[k]}, {sT0}, {C[k]}')
        for k in range(4): a(f'v_mul_f32 {T[k]}, {f2u(LOG2E)}, {T[k]}')
        for k in range(4): a(f'v_exp_f32 {T[k]}, {T[k]}')
        a(f'v_add_f32 {T[0]}, {T[0]}, {T[1]}')
        a(f'v_add_f32 {T[2]}, {T[2]}, {T[3]}')
        a(f'v_add_f32 {T[0]}, {T[0]}, {T[2]}')
        wave_reduce('v_add_f32', [T[0]], [sT1])
        a(f'v_mov_b32 {T[0]}, {sT0}')
        a(f'v_mov_b32 {T[1]}, {sT1}')
        a(f'v_lshlrev_b32 {T[2]}, 3, {VT}')
        a(f'ds_write_b64 {T[2]}, {pr(T[0])} offset:{L_SM}')
        a(f'v_and_b32 {T[2]}, 3, v0')
        a(f'v_lshlrev_b32 {T[2]}, 3, {T[2]}')
        a('s_waitcnt lgkmcnt(0)')
        a('s_barrier')
        a(f'ds_read_b64 {pr(T[0])}, {T[2]} offset:{L_SM}')
        try_issue()
        a('s_waitcnt lgkmcnt(0)')
        a(f'v_max_f32_dpp {T[2]}, {T[0]}, {T[0]} quad_perm:[1,0,3,2] {DPPF}')
        a(f'v_max_f32_dpp {T[2]}, {T[2]}, {T[2]} quad_perm:[2,3,0,1] {DPPF}')
        a(f'v_sub_f32 {T[0]}, {T[0]}, {T[2]}')
        for k in range(4): a(f'v_sub_f32 {C[k]}, {C[k]}, {T[2]}')
        a(f'v_mul_f32 {T[0]}, {f2u(LOG2E)}, {T[0]}')
        for k in range(4): a(f'v_mul_f32 {C[k]}, {f2u(LOG2E)}, {C[k]}')
        a(f'v_exp_f32 {T[0]}, {T[0]}')
        for k in range(4): a(f'v_exp_f32 {C[k]}, {C[k]}')
        a(f'v_mul_f32 {T[1]}, {T[1]}, {T[0]}')
        a(f'v_add_f32_dpp {T[1]}, {T[1]}, {T[1]} quad_perm:[1,0,3,2] {DPPF}')
        a(f'v_add_f32_dpp {T[1]}, {T[1]}, {T[1]} quad_perm:[2,3,0,1] {DPPF}')
        a(f'v_rcp_f32 {T[1]}, {T[1]}')
        for k in range(4): a(f'v_mul_f32 {C[k]}, {C[k]}, {T[1]}')
        a(f'v_cvt_pk_bf16_f32 {C[0]}, {C[0]}, {C[1]}')
        a(f'v_cvt_pk_bf16_f32 {C[1]}, {C[2]}, {C[3]}')
        stamp('smdone')
        a(f's_lshl_b32 {sT0}, {sB}, 5')
        a(f'v_mov_b32 {T[0]}, {sT0}')
        issue('CNT', f'global_load_dword {CNT}, {T[0]}, s[26:27] sc1')
        a(f'v_lshl_add_u32 {T[1]}, {VC}, 2, {VG}')
        a(f's_mul_i32 {sT0}, {sJ}, {8*NU}')
        a(f'v_add_lshl_u32 {T[2]}, {T[1]}, {sT0}, 1')
        issue('B1', f'buffer_load_ushort {B1R}, {T[2]}, {srd(SB1)}, 0 offen')
        a(f'v_and_b32 {T[5]}, 1, v0')
        a(f'v_lshlrev_b32 {T[1]}, 2, {VG}')
        a(f'v_lshl_add_u32 {T[1]}, {T[5]}, 4, {T[1]}')
        a(f's_lshl_b32 {sT0}, {sH}, 5')
        a(f'v_add_u32 {VOUT}, {sT0}, {T[1]}')
        issue('B2', f'global_load_dword {B2R}, {VOUT}, s[22:23]')
        a(f'v_cmp_gt_u32 vcc, 8, {VC}')
        a(f'v_mov_b32 {T[3]}, 0x3f80')
        a(f'v_bfe_u32 {T[4]}, v0, 2, 1')
        a(f'v_cndmask_b32 v{AI}, 0, {T[3]}, vcc')
        a(f'v_xor_b32 v{AI+1}, {T[3]}, v{AI}')
        a(f'v_mov_b32 v{AI+2}, v{AI}')
        a(f'v_mov_b32 v{AI+3}, v{AI+1}')
        a(f'v_lshl_add_u32 {IDX2}, {T[4]}, 1, {T[5]}')
        a(f'v_mul_u32_u24 {IDX2}, 0x5555, {IDX2}')
        a(f'v_lshrrev_b32 {VPB}, 1, {VC}')
        a(f'v_lshl_add_u32 {VPB}, {VT}, 3, {VPB}')
        a(f'v_mul_u32_u24 {VPB}, {SS}, {VPB}')
        a(f'v_lshl_add_u32 {VPB}, {T[5]}, 4, {VPB}')
        a(f'v_lshl_add_u32 {VPB}, {VG}, 3, {VPB}')
        a(f'v_and_b32 {VHO}, 31, v0')
        a(f'v_mul_u32_u24 {VHO}, {SS}, {VHO}')
        a(f'v_lshrrev_b32 {VZW}, 1, {VG}')
        a(f'v_lshl_add_u32 {VZW}, {VT}, 1, {VZW}')
        a(f'v_lshlrev_b32 {VZW}, 8, {VZW}')
        a(f'v_lshl_add_u32 {VZW}, {E7}, 5, {VZW}')
        a(f'v_and_b32 {T[1]}, 1, {VG}')
        a(f'v_lshl_add_u32 {VZW}, {T[1]}, 4, {VZW}')
    def colsum():
        D = int(T[4][1:])
        a(f'v_mov_b32 {T[0]}, 0x3f803f80')
        zero_acc(D)
        A = A0 if kk[0] % 2 == 0 else A1; kk[0] += 1
        for r in range(4): a(f'v_and_b32 v{A+r}, {T[0]}, {MB[r]}')
        for u in range(8): smf(A, f'a[{AW1+8*u}:{AW1+8*u+7}]', f'v[{D}:{D+3}]')
        with locked():
            a('s_mov_b32 exec_lo, 0x00ff00ff')
            a('s_mov_b32 exec_hi, 0xff00ff00')
            a(f'ds_write_b128 {VZW}, v[{D}:{D+3}] offset:{L_CP}')
            a('s_mov_b64 exec, -1')
    def do_v(u, wait=False):
        b = slot_of[('V', u)]
        A = build4(C[u // 16], lane_of[u])
        if wait: waitfor(('V', u, 1))
        smf(A, f'v[{b}:{b+7}]')
        free_slot(('V', u))
    def cnt_check():
        a(f'v_readfirstlane_b32 {sT0}, {CNT}')
        a(f's_cmp_ge_u32 {sT0}, 32')
        a('s_cbranch_scc1 L_cntok')
        a(f's_mov_b32 {sIT}, 0')
        a(f's_lshl_b32 {sT0}, {sB}, 5')
        a(f'v_mov_b32 {T[0]}, {sT0}')
        a('L_cntspin:')
        a(f'global_load_dword {CNT}, {T[0]}, s[26:27] sc1')
        a('s_waitcnt vmcnt(0)')
        a(f'v_readfirstlane_b32 {sT0}, {CNT}')
        a(f's_add_u32 {sIT}, {sIT}, 1')
        a(f's_cmp_gt_u32 {sIT}, 0x40000')
        a('s_cbranch_scc1 L_cntok')
        a('s_sleep 4')
        a(f's_cmp_lt_u32 {sT0}, 32')
        a('s_cbranch_scc1 L_cntspin')
        a('L_cntok:')
    burst = opt.get('burst', 3)
    forced = []
    pstamps = list(range(20, 110, 10))
    def consume():
        while state['q'] < 16 and arrived(('Q', min(state['q'], NQ - 1), 1)) and (NQ == 16 or P['pos'] >= 22):
            do_q(state['q']); state['q'] += 1
            if state['q'] == 16: q_finish(); state['qready'] = True; return
        n = 0
        while state['qready'] and state['k'] < 32 and arrived(('K', state['k'], 1)) and n < burst:
            do_k(state['k']); state['k'] += 1; n += 1
            if state['k'] == 32: softmax(); state['pready'] = True; return
        while state['pready'] and state['v'] < 32 and arrived(('V', state['v'], 1)) and n < burst:
            do_v(state['v']); state['v'] += 1; n += 1
        if not state['cnt'] and arrived('CNT'):
            with locked(): cnt_check()
            state['cnt'] = True
        elif state['cnt'] and not state['cs'] and arrived(('F', 7, 1)):
            colsum(); state['cs'] = True
    while P['pos'] < len(order):
        ok = try_issue()
        for pp in list(pstamps):
            if P['pos'] >= pp: stamp(f'p{pp}'); pstamps.remove(pp)
        auto['cnt'] = 0
        lag = P['pos'] - 1 - RP
        if not ok:
            nxt = [t for t in vm if isinstance(t, tuple) and t[2] == 1]
            before = (state['q'], state['k'], state['v'])
            consume()
            if before == (state['q'], state['k'], state['v']):
                forced.append(order[P['pos']])
                waitfor(nxt[0]); consume()
            continue
        if lag >= 0:
            t, u = order[lag]
            waitfor((t, u, 1))
        consume()
    auto['on'] = False
    assert state['pready'] and state['cnt'] and state['cs'], state
    stamp('allissued')
    free = [p for p in range(NP) if ringuse.get(p) is None]
    GA = None
    for s0 in range(NP - 5):
        if all(p in free for p in range(s0, s0 + 6)): GA = RING + 8 * s0; break
    assert GA is not None, (free, state)
    GB = GA + 32
    GZ = GA + 40
    def hint_load():
        a(f's_load_dwordx8 s[{HS}:{HS+7}], s[12:13], {O_H} glc')
    def hint_store():
        if opt.get('nohint'): return
        a('s_mov_b32 exec_hi, 0' if NH == 32 else f's_mov_b64 exec, {(1 << NH) - 1:#x}')
        issue('HS', f'buffer_store_byte {T[9]}, {VHO}, {srd(SSL)}, {sHO} offen offset:{O_H} sc1')
        a('s_mov_b64 exec, -1')
    hpos = opt.get('hpos', 4)
    a(f's_mov_b32 {sPEND}, 0xff')
    a(f's_mov_b32 {sIT}, 0')
    a(f'v_lshlrev_b32 {T[8]}, 3, {VG}')
    a(f'v_lshl_add_u32 {T[8]}, {VC}, 5, {T[8]}')
    a(f'v_mov_b32 {T[9]}, 0')
    VZR = VV
    a(f'v_lshlrev_b32 {VZR}, 9, {VG}')
    a(f'v_lshl_add_u32 {VZR}, {VC}, 4, {VZR}')
    zero_acc(GB + 4)
    a(f'v_lshlrev_b32 {B1R}, 16, {B1R}')
    if opt.get('mkb'):
        a(f'v_lshlrev_b32 {T[0]}, 2, v0')
        a(f'v_mov_b32 {T[1]}, -1')
        issue('MKB', f'buffer_store_dword {T[1]}, {T[0]}, {srd(SSL)}, {sSLOT} offen offset:{O_B} sc1')
    LW = opt.get('lw', 8)
    while state['v'] < 32:
        while late and ('V', 31, 1) in vm:
            if len(vm) + 2 <= LW + 2 - 2 + 0 or len(vm) <= LW - 2:
                issue_pair(late.pop(0))
            else:
                break
        nxt = vm[1] if len(vm) > 1 else vm[0]
        if nxt[0] != 'V' and arrived(('V', state['v'], 1)) is False:
            waitfor(nxt); continue
        do_v(state['v'], wait=True); state['v'] += 1
    stamp('pvdone')
    if opt.get('stopV'): a('s_branch L_fin')
    a('s_mov_b32 exec_hi, 0')
    a(f'ds_write_b128 {VLDS}, {acc} offset:{L_OP}')
    a('s_mov_b32 exec_hi, -1')
    lmode = opt.get('lmode', 0)
    if lmode == 0:
        while late: issue_pair(late.pop(0))
    a('s_waitcnt lgkmcnt(0)')
    a('s_barrier')
    stamp('obar')
    for p in range(4):
        a(f'ds_read_b64 {pr(T[2*p])}, {T[8]} offset:{L_OP + p*512}')
    if lmode == 1:
        while late: issue_pair(late.pop(0))
    if hpos == 0: hint_store()
    zero_acc()
    a('s_waitcnt lgkmcnt(0)')
    hint_load()
    a(f'v_pk_add_f32 {pr(T[0])}, {pr(T[0])}, {pr(T[2])}')
    a(f'v_pk_add_f32 {pr(T[4])}, {pr(T[4])}, {pr(T[6])}')
    a(f'v_pk_add_f32 {pr(T[0])}, {pr(T[0])}, {pr(T[4])}')
    PK = T[8]
    a(f'v_cvt_pk_bf16_f32 {PK}, {T[0]}, {T[1]}')
    A = build4(PK, 0)
    for k in range(16):
        An = build4(PK, k + 1) if k + 1 < 16 else None
        waitfor(('O', k, 1))
        smf(A, f'a[{AQ+8*k}:{AQ+8*k+7}]'); A = An
        if hpos > 0 and k + 1 == hpos: hint_store()
    waitfor('MKB')
    vm.clear()
    if not opt.get('nopub'): publish(VPUB, sSLOT, 0)
    while late: issue_pair(late.pop(0))
    vm.clear()
    stamp('pubA')
    if opt.get('stopA'): a('s_branch L_fin')
    def ld(u):
        b = GA + 4 * u
        a(f's_mov_b32 {sO}, {u*SS}')
        a(f'buffer_load_dwordx4 v[{b}:{b+3}], {VGA}, {srd(SSL)}, {sO} offen sc1')
    first = True
    a('L_hintA:')
    a('s_waitcnt lgkmcnt(0)')
    for hi in range(2):
        a(f's_and_b32 {sT1}, {sPEND}, {0xf << (4*hi)}')
        a(f's_cbranch_scc0 L_ha_h{hi}')
        for u in range(4 * hi, 4 * hi + 4):
            a(f's_bitcmp0_b32 {sPEND}, {u}')
            a(f's_cselect_b32 {sT0}, 1, s{HS+u}')
            a(f's_cmp_lg_u32 {sT0}, 0')
            a(f's_cbranch_scc1 L_ha{u}')
            a(f's_bitset0_b32 {sPEND}, {u}')
            ld(u)
            a(f'L_ha{u}:')
        a(f'L_ha_h{hi}:')
    a(f's_cmp_eq_u32 {sPEND}, 0')
    a('s_cbranch_scc1 L_preA')
    if opt.get('sleepA'): a(f's_sleep {opt["sleepA"]}')
    hint_load()
    a(f's_add_u32 {sIT}, {sIT}, 1')
    a(f's_cmp_le_u32 {sIT}, 0x2000')
    a('s_cbranch_scc1 L_hintA')
    a('s_waitcnt lgkmcnt(0)')
    a('L_slowA:')
    for u in range(8): ld(u)
    a('L_preA:')
    Rz = [f'v{GZ+e}' for e in range(4)]
    for k in range(2):
        a(f'ds_read_b128 v[{GZ+4*k}:{GZ+4*k+3}], {VZR} offset:{L_CP + k*256}')
    zero_acc()
    a('s_waitcnt lgkmcnt(0)')
    for e in (0, 2): a(f'v_pk_add_f32 v[{GZ+e}:{GZ+e+1}], v[{GZ+e}:{GZ+e+1}], v[{GZ+4+e}:{GZ+5+e}]')
    rs4(Rz)
    a(f'v_mov_b32 {CS}, {Rz[0]}')
    a(f'v_mov_b32 {T[7]}, 0x3f803f80')
    a('s_waitcnt vmcnt(0)')
    for p in range(4):
        smf(AI, f'v[{GA+8*p}:{GA+8*p+7}]', acc, IDX2)
    a(f'v_cmp_u_f32 vcc, v{ACC}, v{ACC+1}')
    a(f'v_pk_add_f32 {pr(T[0])}, {pr(X0)}, v[{ACC}:{ACC+1}]')
    a('s_cbranch_vccz L_pollA_done')
    a(f'v_max3_u32 {T[4]}, v{GA}, v{GA+1}, v{GA+2}')
    for k in range(3, 31, 2):
        a(f'v_max3_u32 {T[4]}, {T[4]}, v{GA+k}, v{GA+k+1}')
    a(f'v_max_u32 {T[4]}, {T[4]}, v{GA+31}')
    a(f'v_cmp_eq_u32 vcc, -1, {T[4]}')
    a('s_cbranch_vccz L_pollA_done')
    a(f's_add_u32 {sIT}, {sIT}, 1')
    a(f's_cmp_le_u32 {sIT}, 0x40000')
    a('s_cbranch_scc1 L_slowA')
    a('L_pollA_done:')
    stamp('pollA')
    a(f'v_cvt_pk_bf16_f32 {PK}, {T[0]}, {T[1]}')
    zero_acc()
    S1, S2 = T[2], T[3]
    fill = [f'v_dot2_f32_bf16 {S1}, {PK}, {T[7]}, 0', f'v_dot2_f32_bf16 {S2}, {PK}, {PK}, 0']
    fill += wave_reduce_ops('v_add_f32', [S1, S2], [])
    fill += [f'ds_write_b32 {VHL}, {PK} offset:{L_H}', f'v_lshlrev_b32 {T[4]}, 3, {VT}']
    A = build8(PK, 0, fill)
    for k in range(8):
        An = build8(PK, k + 1, fill) if k + 1 < 8 else None
        smf(A, f'a[{AW1+8*k}:{AW1+8*k+7}]'); A = An
    assert not fill, fill
    a('s_mov_b32 exec_lo, 0')
    a('s_mov_b32 exec_hi, 0x80000000')
    a(f'ds_write_b64 {T[4]}, {pr(S1)} offset:{L_ST}')
    a('s_mov_b32 exec_lo, 0x00ff00ff')
    a('s_mov_b32 exec_hi, 0xff00ff00')
    a(f'ds_write_b128 {VZW}, {acc} offset:{L_ZP}')
    a('s_mov_b64 exec, -1')
    a('s_waitcnt lgkmcnt(0)')
    a('s_barrier')
    stamp('zbar')
    a(f'ds_read_b128 {pr(T[0], 4)}, {T[9]} offset:{L_ST}')
    a(f'ds_read_b128 {pr(T[4], 4)}, {T[9]} offset:{L_ST + 16}')
    for k in range(2):
        a(f'ds_read_b128 v[{GZ+4*k}:{GZ+4*k+3}], {VZR} offset:{L_ZP + k*256}')
    zero_acc()
    a('s_waitcnt lgkmcnt(0)' if stamps else 's_waitcnt lgkmcnt(2)')
    a(f'v_pk_add_f32 {pr(T[0])}, {pr(T[0])}, {pr(T[2])}')
    a(f'v_pk_add_f32 {pr(T[4])}, {pr(T[4])}, {pr(T[6])}')
    a(f'v_pk_add_f32 {pr(T[0])}, {pr(T[0])}, {pr(T[4])}')
    a(f'v_mul_f32 {T[0]}, {f2u(1.0/512)}, {T[0]}')
    a(f'v_mov_b32 {T[2]}, {f2u(1e-5)}')
    a(f'v_mul_f32 {T[1]}, {f2u(1.0/512)}, {T[1]}')
    a('s_waitcnt lgkmcnt(0)')
    for e in (0, 2): a(f'v_pk_add_f32 v[{GZ+e}:{GZ+e+1}], v[{GZ+e}:{GZ+e+1}], v[{GZ+4+e}:{GZ+5+e}]')
    a(f'v_fma_f32 {T[1]}, -{T[0]}, {T[0]}, {T[1]}')
    a(f'v_max_f32 {T[1]}, 0, {T[1]}')
    rs4(Rz, [f'v_add_f32 {T[1]}, {T[1]}, {T[2]}', f'v_rsq_f32 {T[1]}, {T[1]}'])
    Z = T[3]
    KK = -2.0 * 0.7978845608028654 * LOG2E
    a(f'v_fma_f32 {Z}, -{T[0]}, {CS}, {Rz[0]}')
    a(f'v_mov_b32 {T[2]}, {f2u(KK)}')
    a(f'v_fma_f32 {Z}, {Z}, {T[1]}, {B1R}')
    a(f'v_mul_f32 {T[1]}, {Z}, {Z}')
    a(f'v_fmac_f32 {T[2]}, {f2u(KK * 0.044715)}, {T[1]}')
    a(f'v_mul_f32 {T[2]}, {T[2]}, {Z}')
    a(f'v_exp_f32 {T[2]}, {T[2]}')
    a(f's_lshl_b32 {sT0}, {sH}, 5')
    a(f'v_add_f32 {T[2]}, 1.0, {T[2]}')
    a(f'v_rcp_f32 {T[2]}, {T[2]}')
    a(f'v_mul_f32 {Z}, {Z}, {T[2]}')
    a(f'v_mov_b32_dpp {T[1]}, {Z} row_shl:{NU} {DPPF}')
    a(f'v_cvt_pk_bf16_f32 {PK}, {Z}, {T[1]}')
    A = build4(PK, 0)
    for k in range(NU):
        An = build4(PK, k + 1) if k + 1 < NU else None
        smf(A, f'a[{AW2+8*k}:{AW2+8*k+7}]'); A = An
    publish(VPB, sT0, O_B)
    stamp('pubB')
    a(f's_cmp_lg_u32 {sW}, 0')
    a('s_cbranch_scc1 L_fin' if stamps else 's_cbranch_scc1 L_end')
    a(f'ds_read_b32 {T[6]}, {VOUT} offset:{L_H}')
    a(f's_lshl_b32 {sT2}, {sB}, 10')
    a(f'v_add_u32 {VOUT}, {sT2}, {VOUT}')
    a(f's_mov_b32 {sIT}, 0')
    a(f'v_lshlrev_b32 {T[2]}, 16, {B2R}')
    a(f'v_and_b32 {T[3]}, 0xffff0000, {B2R}')
    a('s_waitcnt lgkmcnt(0)')
    a(f'v_lshlrev_b32 {T[4]}, 16, {T[6]}')
    a(f'v_and_b32 {T[5]}, 0xffff0000, {T[6]}')
    a(f'v_pk_add_f32 {pr(T[2])}, {pr(T[2])}, {pr(T[4])}')
    if opt.get('dB', 8): a(f's_sleep {opt.get("dB", 8)}')
    a('L_pollB:')
    a(f'buffer_load_dwordx4 v[{GB}:{GB+3}], {VGB}, {srd(SSL)}, {sSLOT} offen offset:{O_B} sc1')
    zero_acc()
    a('s_waitcnt vmcnt(0)')
    smf(AI, f'v[{GB}:{GB+7}]', acc, IDX2)
    a(f'v_max3_u32 {T[4]}, v{GB}, v{GB+1}, v{GB+2}')
    a(f'v_max_u32 {T[4]}, {T[4]}, v{GB+3}')
    a(f'v_cmp_eq_u32 vcc, -1, {T[4]}')
    a('s_cbranch_vccz L_pollB_done')
    a(f's_add_u32 {sIT}, {sIT}, 1')
    a(f's_cmp_le_u32 {sIT}, 0x40000')
    a('s_nop 4')
    a('s_cbranch_scc1 L_pollB')
    a('L_pollB_done:')
    stamp('pollB')
    a('s_nop 3')
    for n in (8, 4, 2):
        for e in range(2): a(f'v_add_f32_dpp v{ACC+e}, v{ACC+e}, v{ACC+e} row_ror:{n} {DPPF}')
    a(f'v_pk_add_f32 v[{ACC}:{ACC+1}], v[{ACC}:{ACC+1}], {pr(T[2])}')
    a('s_mov_b32 exec_lo, 0x00030003')
    a('s_mov_b32 exec_hi, 0x00030003')
    a(f'v_cvt_pk_bf16_f32 {T[0]}, v{ACC}, v{ACC+1}')
    a(f'global_store_dword {VOUT}, {T[0]}, s[24:25]')
    if stamps:
        a('s_waitcnt vmcnt(0)')
        stamp('end')
        a('L_fin:')
        a('s_waitcnt lgkmcnt(0)')
        a('s_mov_b64 exec, 1')
        if 'enc' in opt:
            k = opt['enc']; F = opt.get('encf', 8)
            a(f'v_mov_b32 {T[8]}, 0')
            a(f's_not_b32 {sT0}, s{STB}')
            a(f'v_mov_b32 {T[0]}, {sT0}')
            a(f'global_atomic_umax {T[8]}, {T[0]}, s[26:27] offset:4 sc1')
            if stnames[k] in ('end', 'pollB'):
                a(f's_cmp_lg_u32 {sW}, 0')
                a('s_cbranch_scc1 L_end')
            a(f'v_mov_b32 {T[1]}, s{STB+2*k}')
            a(f'global_atomic_umax {T[8]}, {T[1]}, s[26:27] offset:132 sc1')
            a(f's_or_b32 {sT0}, s2, {sW}')
            a(f's_cmp_lg_u32 {sT0}, 0')
            a('s_cbranch_scc1 L_end')
            a(f's_mov_b32 {sT2}, 6000')
            a(f's_mov_b32 {sT3}, 0')
            a('L_dspin:')
            a('s_memrealtime s[98:99]')
            a('s_waitcnt lgkmcnt(0)')
            a(f's_sub_u32 s98, s98, s{STB}')
            a(f's_cmp_lt_u32 s98, {sT2}')
            a('s_cbranch_scc1 L_dspin')
            a(f's_cmp_lg_u32 {sT3}, 0')
            a('s_cbranch_scc1 L_end')
            a(f'global_load_dword {T[0]}, {T[8]}, s[26:27] offset:4 sc1')
            a(f'global_load_dword {T[1]}, {T[8]}, s[26:27] offset:132 sc1')
            a('s_waitcnt vmcnt(0)')
            a(f'v_readfirstlane_b32 {sT0}, {T[0]}')
            a(f'v_readfirstlane_b32 {sT1}, {T[1]}')
            a(f's_not_b32 {sT0}, {sT0}')
            a(f's_sub_u32 {sT1}, {sT1}, {sT0}')
            a(f's_min_u32 {sT1}, {sT1}, 6000')
            a(f's_mul_i32 {sT1}, {sT1}, {F}')
            a(f's_add_u32 {sT2}, {sT1}, 6200')
            a(f's_mov_b32 {sT3}, 1')
            a('s_branch L_dspin')
        a('s_add_u32 s28, s28, 0x20000000')
        a('s_addc_u32 s29, s29, 0')
        a(f's_lshl_b32 {sT0}, s2, 2')
        a(f's_add_u32 {sT0}, {sT0}, {sW}')
        a(f's_mul_i32 {sT0}, {sT0}, {nst[0]*8}')
        a(f'v_mov_b32 {T[8]}, {sT0}')
        for k in range(nst[0]):
            a(f'v_mov_b32 v{RING+2*k}, s{STB+2*k}')
            a(f'v_mov_b32 v{RING+2*k+1}, s{STB+2*k+1}')
            a(f'global_store_dwordx2 {T[8]}, v[{RING+2*k}:{RING+2*k+1}], s[28:29] offset:{8*k}')
    a('L_end:')
    a('s_endpgm')
    a('.section .rodata,"a"')
    a('.p2align 6')
    a(f'.amdhsa_kernel {NAME}_kernel')
    a(f'.amdhsa_next_free_vgpr {448 + 8*NU}')
    a('.amdhsa_next_free_sgpr 102')
    a('.amdhsa_accum_offset 256')
    a('.amdhsa_group_segment_fixed_size 0')
    a('.amdhsa_kernarg_size 104')
    a('.amdhsa_user_sgpr_count 2')
    a('.amdhsa_user_sgpr_kernarg_segment_ptr 1')
    a('.amdhsa_system_sgpr_workgroup_id_x 1')
    a('.amdhsa_float_denorm_mode_32 3')
    a('.end_amdhsa_kernel')
    txt = a0.finish()
    if forced: print('FORCED WAITS before', forced)
    return HEADER + txt, stnames, a0.npad, order

if __name__ == '__main__':
    name = sys.argv[1]; opt = json.loads(sys.argv[2]) if len(sys.argv) > 2 else {}
    st = sys.argv[3].split(',') if len(sys.argv) > 3 else False
    t, n, pad, order = gen(st, opt)
    open(name, 'w').write(t)
    print(name, 'stamps', n, 'pad', pad)
    if opt.get('show'): print(' '.join(f'{t}{u}' for t, u in order))
```
